```python
import torch

def _softmax(x, axis=-1):
    return torch.softmax(x, dim=axis)
def _gelu(x):
    return torch.nn.functional.gelu(x, approximate="tanh")
def _silu(x):
    return torch.nn.functional.silu(x)
def _sigmoid(x):
    return torch.sigmoid(x)
def _layernorm(x, axis=-1, eps=1e-5):
    m = x.mean(dim=axis, keepdim=True)
    v = x.var(dim=axis, keepdim=True, unbiased=False)
    return (x - m) / torch.sqrt(v + eps)
def _scatter_add(tgt, idx, src, axis=0):
    return tgt.clone().index_add_(axis, idx, src)
def _segment_sum(src, seg, n):
    out = torch.zeros((n,) + src.shape[1:], dtype=src.dtype)
    return out.index_add_(0, seg, src)
def _pad(x, pw):
    flat = tuple(v for pair in reversed(pw) for v in pair)
    return torch.nn.functional.pad(x, flat)

kernel_name = 'parallel_sum__gqa_block_cached__geglu_ffn__decode'

def setup_inputs():

    _w = (lambda a: (lambda t: t.to(torch.bfloat16) if t.is_floating_point() else t)(torch.as_tensor(a)))
    def _A_setup():
        B, Sq, D = 4, 1, 640
        Hq, Hkv, Sk, Dh = 32, 32, 4096, 128
        assert Hq % Hkv == 0, (Hq, Hkv)
        return {
            "x": _w((lambda *s: torch.randn(*s, dtype=torch.bfloat16) * 0.05)(B, Sq, D)),
            "k_cache": _w((lambda *s: torch.randn(*s, dtype=torch.bfloat16) * 3.2)(B, Hkv, Sk, Dh)),
            "v_cache": _w((lambda *s: torch.randn(*s, dtype=torch.bfloat16) * 1.6)(B, Hkv, Sk, Dh)),
            "wq": _w((lambda *s: torch.randn(*s, dtype=torch.bfloat16) * 3.2)(D, Hq * Dh) * (D ** -0.5)),
            "wo": _w((lambda *s: torch.randn(*s, dtype=torch.bfloat16) * 1.6)(Hq * Dh, D) * ((Hq * Dh) ** -0.5)),
        }
    _A_in = _A_setup()

    def _B_setup():
        B, S, D, F = 4, 1, 640, 1728
        return {
            "x": _w((lambda *s: torch.randn(*s, dtype=torch.bfloat16) * 0.05)(B, S, D)),
            "w_gate": _w((lambda *s: torch.randn(*s, dtype=torch.bfloat16) * 0.05)(D, F)),
            "w_up": _w((lambda *s: torch.randn(*s, dtype=torch.bfloat16) * 0.05)(D, F)),
            "w_down": _w((lambda *s: torch.randn(*s, dtype=torch.bfloat16) * 0.05)(F, D)),
        }
    _B_in = _B_setup()

    return {
        "A_x": _A_in["x"],
        "A_k_cache": _A_in["k_cache"],
        "A_v_cache": _A_in["v_cache"],
        "A_wq": _A_in["wq"],
        "A_wo": _A_in["wo"],
        "B_x": _B_in["x"],
        "B_w_gate": _B_in["w_gate"],
        "B_w_up": _B_in["w_up"],
        "B_w_down": _B_in["w_down"],
    }

def reference(A_x, A_k_cache, A_v_cache, A_wq, A_wo, B_x, B_w_gate, B_w_up, B_w_down):
    def _A_ref(x, k_cache, v_cache, wq, wo):
        B, Sq, D = x.shape
        Hq, Dh = 32, 128
        Hkv = k_cache.shape[1]
        rep = Hq // Hkv
        q = (lambda x, *d: x.permute(*d))((x @ wq).reshape(B, Sq, Hq, Dh), 0, 2, 1, 3)
        k = (lambda x, n, axis: torch.repeat_interleave(x, n, dim=axis))(k_cache, rep, axis=1)
        v = (lambda x, n, axis: torch.repeat_interleave(x, n, dim=axis))(v_cache, rep, axis=1)
        scores = torch.einsum("bhqd,bhkd->bhqk", q, k) * (Dh ** -0.5)
        p = _softmax(scores, axis=-1)
        o = torch.einsum("bhqk,bhkd->bhqd", p, v)
        return (lambda x, *d: x.permute(*d))(o, 0, 2, 1, 3).reshape(B, Sq, Hq * Dh) @ wo

    def _B_ref(x, w_gate, w_up, w_down):
        return (_gelu(x @ w_gate) * (x @ w_up)) @ w_down

    x = A_x
    xn = _layernorm(x, axis=-1)
    return x + _A_ref(xn, A_k_cache, A_v_cache, A_wq, A_wo) + _B_ref(xn, B_w_gate, B_w_up, B_w_down)
```

```python
import sys

KN = "parallel_sum__gqa_block_cached__geglu_ffn__decode"

class G:
    def __init__(self):
        self.L = []
        self.q = []
        self.uid = 0
    def __call__(self, s):
        for ln in s.split("\n"):
            self.L.append("  " + ln.strip() if ln.strip() and not ln.strip().endswith(":") else ln.strip())
    def c(self, s):
        self.L.append("  ; " + s)
    def vm(self, tag, s):
        self(s); self.q.append(tag)
    def wait(self, tag):
        if tag not in self.q: return
        idx = len(self.q) - 1 - self.q[::-1].index(tag)
        n = len(self.q) - idx - 1
        assert n <= 63, n
        self(f"s_waitcnt vmcnt({n})")
        self.q = self.q[idx + 1:]
    def label(self, base):
        self.uid += 1
        return f"L_{base}_{self.uid}"
    def nop(self, n):
        while n > 0:
            k = min(n, 16); self(f"s_nop {k-1}"); n -= k

DEFAULTS = dict(
    ld_nt="nt",
    hold_tiles=6,
    ahead=2,
    wq_ahead=4,
    stamp=0,
    dump=0,
    spin_max=40000,
)

WS_Y = 0
WS_ML = 0xA0000
WS_GU = 0xB0000
WS_SIZE = 0x200000
WS_STAMP = 0x180000
WS_DUMP = 0x190000
L_XN = 0
L_ZERO = 10240
L_GU = 10304
L_ST = 12352
L_CNT = 12416
L_QP = 14336
L_QS = 18432
L_YP = 20480
L_OP = 40960
LDS_BYTES = 45056

sX, sK, sV, sWQ, sWO, sWG, sWU, sWD, sOUT, sDBG, sWS = [f"s[{28+4*i}:{31+4*i}]" for i in range(11)]
sW, sH, sB, sHALF, sSLOT, sKVB, sWQB, sWOB, sWDB, sFFB = [f"s{72+i}" for i in range(10)]
sT0, sT1, sT2 = "s82", "s83", "s85"
sMASK0 = "s[4:5]"
sMASK = "s[6:7]"
sEXEC = "s[8:9]"
sGUC = "s10"
sMLP = "s11"
sMLO = "s12"
sYO = "s13"
sGUP = "s14"
sUNIT = "s15"
sSPIN = "s16"
sRB = "s17"
sST0 = 18

vTID, vLANE, vC, vG = 0, 1, 2, 3
vM = [4, 5, 6, 7]
vOKV, vOWQ, vOWO, vOWD, vOFA, vOFB = 8, 9, 10, 11, 12, 13
vQ = [14, 15, 16, 17]
vS = [18, 19, 20, 21]
vD = 22
vA = 26
vT = 42
RING = 56
WOA = 152
vWQR = 152
vFF = 176
vXQ = 192
vXF = 212
vDF = 220
NVGPR = 252

def r4(b): return f"v[{b}:{b+3}]"
def r2(b): return f"v[{b}:{b+1}]"

LOG2E = 0x3FB8AA3B
SCALE = 0x3DB504F3

def gen(**kw):
    P = dict(DEFAULTS); P.update(kw)
    nt = P["ld_nt"]
    g = G()
    hdr = []
    hdr.append("; fused LayerNorm + GQA decode attention (split-KV, 2 halves per (b,h)) + out-projection + GeGLU FFN")
    hdr.append(f"; @launch grid=(256,1,1) block=(512,1,1) lds={LDS_BYTES}")
    hdr.append('.amdgcn_target "amdgcn-amd-amdhsa--gfx950"')
    hdr.append(".text")
    hdr.append(f".globl {KN}_kernel")
    hdr.append(".p2align 8")
    hdr.append(f".type {KN}_kernel,@function")
    hdr.append(f"{KN}_kernel:")

    nstamp = [0]
    def stamp(name):
        if P["stamp"]:
            i = nstamp[0]; nstamp[0] += 1
            g(f"s_memrealtime s[92:93]\ns_waitcnt lgkmcnt(0)\nv_writelane_b32 v252, s92, {i}")
            STAMPS.append(name)
    STAMPS = []

    def allreduce_row(op, regs, steps=(8, 4, 2, 1)):
        for st in steps:
            for r in regs:
                g(f"{op}_dpp v{r}, v{r}, v{r} row_ror:{st} row_mask:0xf bank_mask:0xf")
            if len(regs) < 3: g.nop(3 - len(regs))
    def allreduce_cross(op, r, t):
        g(f"v_mov_b32 v{t}, v{r}"); g.nop(2)
        g(f"v_permlane16_swap_b32 v{r}, v{t}"); g.nop(1)
        g(f"{op} v{r}, v{r}, v{t}")
        g(f"v_mov_b32 v{t}, v{r}"); g.nop(2)
        g(f"v_permlane32_swap_b32 v{r}, v{t}"); g.nop(1)
        g(f"{op} v{r}, v{r}, v{t}")
    def allreduce64(op, r, t):
        g.nop(2)
        allreduce_row(op, [r])
        allreduce_cross(op, r, t)
    def bf16r(dst, src):
        g(f"v_cvt_pk_bf16_f32 v{dst}, v{src}, v{src}")
        g(f"v_and_b32 v{dst}, 0xffff0000, v{dst}")

    g("s_cmp_ge_u32 s2, 256\ns_cbranch_scc1 L_end")
    g("s_load_dwordx16 s[4:19], s[0:1], 0\ns_load_dwordx8 s[20:27], s[0:1], 64")
    if P["stamp"]:
        g("v_mov_b32 v252, 0")
        stamp("start")
    g(f"v_and_b32 v{vLANE}, 63, v0\nv_lshrrev_b32 v{vT}, 6, v0")
    g(f"v_and_b32 v{vC}, 15, v{vLANE}\nv_lshrrev_b32 v{vG}, 4, v{vLANE}")
    g(f"v_readfirstlane_b32 {sW}, v{vT}")
    g(f"s_and_b32 {sT0}, s2, 7\ns_lshr_b32 {sT1}, s2, 3")
    g(f"s_lshl_b32 {sH}, {sT0}, 2\ns_lshr_b32 {sT2}, {sT1}, 3\ns_add_u32 {sH}, {sH}, {sT2}")
    g(f"s_and_b32 {sB}, {sT1}, 7\ns_and_b32 {sHALF}, {sB}, 1\ns_lshr_b32 {sB}, {sB}, 1")
    g(f"s_lshl_b32 {sSLOT}, {sH}, 1\ns_add_u32 {sSLOT}, {sSLOT}, {sHALF}")
    g(f"v_and_b32 v{vT}, 7, v{vLANE}")
    g(f"v_and_b32 v{vT+1}, 1, v{vT}\nv_lshlrev_b32 v{vT+1}, 4, v{vT+1}")
    g(f"v_mov_b32 v{vT+2}, 0xffff\nv_lshlrev_b32 v{vT+2}, v{vT+1}, v{vT+2}")
    g(f"v_lshrrev_b32 v{vT+3}, 1, v{vT}")
    for w in range(4):
        g(f"v_cmp_eq_u32 vcc, {w}, v{vT+3}"); g.nop(2)
        g(f"v_cndmask_b32 v{vM[w]}, 0, v{vT+2}, vcc")
    g(f"v_lshlrev_b32 v{vT}, 4, v{vC}")
    g(f"v_lshl_add_u32 v{vOKV}, v{vG}, 10, v{vT}")
    g(f"v_lshl_add_u32 v{vOWQ}, v{vG}, 13, v{vT}")
    g(f"v_mul_u32_u24 v{vOWO}, 5120, v{vG}\nv_add_u32 v{vOWO}, v{vOWO}, v{vT}")
    g(f"v_mul_u32_u24 v{vOWD}, 1280, v{vG}\nv_add_u32 v{vOWD}, v{vOWD}, v{vT}")
    g(f"v_lshrrev_b32 v{vT+1}, 3, v{vLANE}\nv_and_b32 v{vT+2}, 7, v{vLANE}\nv_lshlrev_b32 v{vT+2}, 4, v{vT+2}")
    g(f"v_mul_u32_u24 v{vOFA}, 3456, v{vT+1}\nv_add_u32 v{vOFA}, v{vOFA}, v{vT+2}")
    g(f"v_add_u32 v{vOFB}, {8*3456}, v{vOFA}")
    g(f"v_cmp_gt_u32 vcc, 2, v{vT+1}\nv_mov_b32 v{vT+3}, 0x40000000"); g.nop(1)
    g(f"v_cndmask_b32 v{vOFB}, v{vT+3}, v{vOFB}, vcc")
    g("s_waitcnt lgkmcnt(0)")
    ptr = {sX: 4, sK: 6, sV: 8, sWQ: 10, sWO: 12, sWG: 16, sWU: 18, sWD: 20, sOUT: 22, sDBG: 24, sWS: 26}
    size = {sX: 5120, sK: 0x8000000, sV: 0x8000000, sWQ: 5242880, sWO: 5242880, sWG: 2211840, sWU: 2211840,
            sWD: 2211840, sOUT: 5120, sDBG: 256, sWS: WS_SIZE}
    for srd, p in ptr.items():
        b = int(srd[2:srd.index(":")])
        g(f"s_mov_b32 s{b}, s{p}\ns_and_b32 s{b+1}, s{p+1}, 0xffff\ns_mov_b32 s{b+2}, {size[srd]}\ns_mov_b32 s{b+3}, 0x20000")
    g(f"s_lshl_b32 {sT0}, {sB}, 5\ns_add_u32 {sT0}, {sT0}, {sH}")
    g(f"s_lshl_b32 {sKVB}, {sT0}, 20\ns_lshl_b32 {sT1}, {sHALF}, 19\ns_add_u32 {sKVB}, {sKVB}, {sT1}")
    g(f"s_lshl_b32 {sT1}, {sW}, 12\ns_add_u32 {sKVB}, {sKVB}, {sT1}")
    g(f"s_lshl_b32 {sT1}, {sT0}, 1\ns_add_u32 {sT2}, {sT1}, {sHALF}\ns_lshl_b32 {sMLO}, {sT2}, 7\ns_add_u32 {sMLO}, {sMLO}, {WS_ML}")
    g(f"s_xor_b32 {sT2}, {sT2}, 1\ns_lshl_b32 {sMLP}, {sT2}, 7\ns_add_u32 {sMLP}, {sMLP}, {WS_ML}")
    g(f"s_mul_i32 {sWQB}, {sW}, {80*8192}\ns_lshl_b32 {sT1}, {sH}, 8\ns_add_u32 {sWQB}, {sWQB}, {sT1}")
    g(f"s_lshl_b32 {sT1}, {sH}, 7\ns_lshl_b32 {sT2}, {sW}, 4\ns_add_u32 {sT1}, {sT1}, {sT2}\ns_mul_i32 {sWOB}, {sT1}, 1280")
    g(f"s_lshl_b32 {sT1}, {sSLOT}, 5\ns_lshl_b32 {sT2}, {sW}, 2\ns_add_u32 {sT1}, {sT1}, {sT2}\ns_mul_i32 {sWDB}, {sT1}, 1280")
    g(f"s_lshl_b32 {sT1}, {sB}, 6\ns_add_u32 {sT1}, {sT1}, {sSLOT}\ns_mul_i32 {sYO}, {sT1}, 2560")
    g(f"s_lshr_b32 {sT0}, s2, 3\ns_and_b32 {sRB}, s2, 7")
    g(f"s_mul_i32 {sT1}, {sRB}, 80\ns_mul_i32 {sT2}, {sW}, 10\ns_add_u32 {sT1}, {sT1}, {sT2}\ns_mul_i32 {sFFB}, {sT1}, 3456")
    g(f"s_lshl_b32 {sT1}, {sT0}, 7\ns_add_u32 {sFFB}, {sFFB}, {sT1}")
    g(f"s_lshl_b32 {sGUP}, {sT0}, 12\ns_lshl_b32 {sT1}, {sRB}, 9\ns_add_u32 {sGUP}, {sGUP}, {sT1}\ns_add_u32 {sGUP}, {sGUP}, {WS_GU}")
    g(f"s_cmp_lt_u32 s2, 216\ns_cselect_b32 {sUNIT}, 1, 0\ns_cselect_b32 {sFFB}, {sFFB}, 0x20000000")
    g(f"s_mul_i32 {sT0}, {sB}, 27\ns_lshr_b32 {sT1}, {sSLOT}, 1\ns_add_u32 {sT0}, {sT0}, {sT1}\ns_lshl_b32 {sGUC}, {sT0}, 12")
    g(f"s_and_b32 {sT1}, {sSLOT}, 1\ns_lshl_b32 {sT1}, {sT1}, 7\ns_add_u32 {sGUC}, {sGUC}, {sT1}")
    g(f"s_lshl_b32 {sT1}, {sW}, 4\ns_add_u32 {sGUC}, {sGUC}, {sT1}\ns_add_u32 {sGUC}, {sGUC}, {WS_GU}")
    g(f"s_cmp_lt_u32 {sSLOT}, 54\ns_cselect_b32 {sGUC}, {sGUC}, 0x20000000")
    g("s_mov_b32 s4, 0x00010001\ns_mov_b32 s5, 0x00010001")

    g.c("wave 7: write the 'not yet written' marker into this workgroup's hand-off slots, then count in")
    g(f"s_cmp_lg_u32 {sW}, 7\ns_cbranch_scc1 L_noclear")
    t = vT
    g(f"v_mov_b32 v{t}, -1\nv_mov_b32 v{t+1}, -1\nv_mov_b32 v{t+2}, -1\nv_mov_b32 v{t+3}, -1")
    g(f"v_lshlrev_b32 v{t+4}, 4, v{vLANE}")
    g(f"buffer_store_dwordx4 {r4(t)}, v{t+4}, {sWS}, {sYO} offen sc1")
    g(f"buffer_store_dwordx4 {r4(t)}, v{t+4}, {sWS}, {sYO} offen offset:1024 sc1")
    g("s_mov_b32 exec_lo, -1\ns_mov_b32 exec_hi, 0")
    g(f"buffer_store_dwordx4 {r4(t)}, v{t+4}, {sWS}, {sYO} offen offset:2048 sc1")
    g(f"s_mov_b64 exec, 1")
    g(f"buffer_store_dwordx2 {r2(t)}, off, {sWS}, {sMLO} sc1")
    g(f"s_mov_b64 exec, -1")
    g(f"v_lshrrev_b32 v{t+5}, 5, v{vLANE}\nv_mul_u32_u24 v{t+5}, {27*4096}, v{t+5}\nv_and_b32 v{t+6}, 31, v{vLANE}\nv_lshl_add_u32 v{t+5}, v{t+6}, 4, v{t+5}")
    g(f"s_cmp_eq_u32 {sUNIT}, 0\ns_cbranch_scc1 L_noclear_gu")
    g(f"s_add_u32 {sT0}, {sGUP}, {2*27*4096}")
    g(f"buffer_store_dwordx4 {r4(t)}, v{t+5}, {sWS}, {sGUP} offen sc1")
    g(f"buffer_store_dwordx4 {r4(t)}, v{t+5}, {sWS}, {sT0} offen sc1")
    g("L_noclear_gu:")
    g("s_waitcnt vmcnt(0)")
    g(f"v_mov_b32 v{t+7}, 1\ns_mov_b64 exec, 1")
    g(f"buffer_atomic_add v{t+7}, off, {sDBG}, 0 sc1")
    g("s_mov_b64 exec, -1")
    g("L_noclear:")

    g(f"v_lshlrev_b32 v{vT}, 3, v0\nv_mov_b32 v{vT+2}, 0\nv_mov_b32 v{vT+3}, 0")
    g(f"ds_write_b64 v{vT}, {r2(vT+2)} offset:{L_ZERO}")

    kv_issued = [0]
    def tile_base(T): return RING + 16 * (T % 6)
    def issue_kv_load():
        n = kv_issued[0]
        if n >= 128: return
        T, r = n // 4, n % 4
        t = T % 16
        srd = sK if T < 16 else sV
        if r == 0:
            g(f"s_add_u32 s84, {sKVB}, {t*32768}")
        g.vm(("kv", n), f"buffer_load_dwordx4 {r4(tile_base(T)+4*r)}, v{vOKV}, {srd}, s84 offen offset:{r*256} {nt}")
        kv_issued[0] += 1
    wq_issued = [0]
    def issue_wq():
        n = wq_issued[0]
        if n >= 20: return
        g(f"s_add_u32 {sT0}, {sWQB}, {n*32768}")
        g.vm(("wq", n), f"buffer_load_dwordx4 {r4(vWQR+4*(n%6))}, v{vOWQ}, {sWQ}, {sT0} offen {nt}")
        wq_issued[0] += 1

    g(f"s_cmp_ge_u32 {sW}, 4\ns_cbranch_scc1 L_nox")
    vXR = vXQ
    g(f"v_lshlrev_b32 v{vT}, 2, v{vLANE}\ns_mul_i32 {sT0}, {sW}, 1280")
    for j in range(5):
        g(f"buffer_load_dword v{vXR+j}, v{vT}, {sX}, {sT0} offen offset:{j*256} {nt}")
    g("L_nox:")
    issue_wq(); issue_kv_load(); issue_wq(); issue_kv_load()
    g(f"s_cmp_ge_u32 {sW}, 4\ns_cbranch_scc1 L_noln")
    g("s_waitcnt vmcnt(4)")
    xf = vXF
    for j in range(5):
        g(f"v_lshlrev_b32 v{xf+2*j}, 16, v{vXR+j}\nv_and_b32 v{xf+2*j+1}, 0xffff0000, v{vXR+j}")
    a = vT; b_ = vT + 1; tm = vT + 2
    g(f"v_add_f32 v{a}, v{xf}, v{xf+1}")
    for j in range(2, 10): g(f"v_add_f32 v{a}, v{a}, v{xf+j}")
    allreduce64("v_add_f32", a, tm)
    g(f"v_mul_f32 v{a}, 0x3acccccd, v{a}")
    d = xf + 10
    for j in range(10): g(f"v_sub_f32 v{d+j}, v{xf+j}, v{a}")
    g(f"v_mul_f32 v{b_}, v{d}, v{d}")
    for j in range(1, 10): g(f"v_fmac_f32 v{b_}, v{d+j}, v{d+j}")
    allreduce64("v_add_f32", b_, tm)
    g(f"v_mul_f32 v{b_}, 0x3acccccd, v{b_}")
    bf16r(a, a)
    bf16r(b_, b_)
    g(f"v_add_f32 v{b_}, 0x3727c5ac, v{b_}")
    bf16r(b_, b_)
    g(f"v_sqrt_f32 v{b_}, v{b_}"); g.nop(1)
    bf16r(b_, b_)
    g(f"v_rcp_f32 v{b_}, v{b_}"); g.nop(1)
    for j in range(10):
        g(f"v_sub_f32 v{d+j}, v{xf+j}, v{a}")
    for j in range(10):
        bf16r(d + j, d + j)
    for j in range(10):
        g(f"v_mul_f32 v{d+j}, v{d+j}, v{b_}")
    for j in range(10):
        g(f"v_cvt_pk_bf16_f32 v{d+j}, v{d+j}, v{d+j}")
    g(f"s_mul_i32 {sT0}, {sW}, 2560\nv_lshlrev_b32 v{tm}, 3, v{vLANE}\nv_add_u32 v{tm}, {sT0}, v{tm}")
    for j in range(5):
        g(f"ds_write_b64 v{tm}, {r2(d+2*j)} offset:{L_XN + j*512}")
    g("L_noln:")
    g(f"s_add_u32 {sT0}, {sFFB}, 0")
    g.vm("f0", f"buffer_load_dwordx4 {r4(vFF)}, v{vOFA}, {sWG}, {sFFB} offen {nt}")
    g.vm("f1", f"buffer_load_dwordx4 {r4(vFF+4)}, v{vOFB}, {sWG}, {sFFB} offen {nt}")
    g.vm("f2", f"buffer_load_dwordx4 {r4(vFF+8)}, v{vOFA}, {sWU}, {sFFB} offen {nt}")
    g.vm("f3", f"buffer_load_dwordx4 {r4(vFF+12)}, v{vOFB}, {sWU}, {sFFB} offen {nt}")
    while wq_issued[0] < P["wq_ahead"]:
        issue_wq(); issue_kv_load()
    g("s_waitcnt lgkmcnt(0)\ns_barrier")
    stamp("ln_done")

    g(f"s_mul_i32 {sT0}, {sB}, 640\ns_mul_i32 {sT1}, {sW}, 80\ns_add_u32 {sT0}, {sT0}, {sT1}\ns_lshl_b32 {sT0}, {sT0}, 2")
    g(f"v_lshl_add_u32 v{vT}, v{vG}, 2, {sT0}")
    for t_ in range(20):
        g(f"ds_read_b32 v{vXQ+t_}, v{vT} offset:{L_XN + t_*16}")
    g(f"s_mul_i32 {sT0}, {sRB}, 80\ns_mul_i32 {sT1}, {sW}, 10\ns_add_u32 {sT0}, {sT0}, {sT1}\ns_lshl_b32 {sT0}, {sT0}, 2")
    g(f"v_lshrrev_b32 v{vT+1}, 3, v{vLANE}\nv_lshl_add_u32 v{vT+1}, v{vT+1}, 2, {sT0}")
    for be in range(4):
        for part in range(2):
            g(f"ds_read_b32 v{vXF+2*be+part}, v{vT+1} offset:{L_XN + be*2560 + part*32}")
    g("s_waitcnt lgkmcnt(0)")
    k_target = P["hold_tiles"] * 4
    for t_ in range(20):
        ab = vA + 4 * (t_ % 4)
        for w4 in range(4):
            g(f"v_and_b32 v{ab+w4}, v{vXQ+t_}, v{vM[w4]}")
        g.wait(("wq", t_))
        g.nop(2)
        cin = "0" if t_ == 0 else r4(vD)
        g(f"v_mfma_f32_16x16x32_bf16 {r4(vD)}, {r4(ab)}, {r4(vWQR+4*(t_%6))}, {cin}")
        issue_wq()
        if kv_issued[0] < k_target: issue_kv_load()
        if t_ == 7:
            g.wait("f3")
            for be in range(4):
                for part in range(2):
                    ab2 = vA + 4 * ((2 * be + part) % 4)
                    for w4 in range(4):
                        g(f"v_and_b32 v{ab2+w4}, v{vXF+2*be+part}, v{vM[w4]}")
                    g.nop(2)
                    for mat in range(2):
                        dd = vDF + (be * 2 + mat) * 4
                        cin = "0" if part == 0 else r4(dd)
                        g(f"v_mfma_f32_16x16x32_bf16 {r4(dd)}, {r4(ab2)}, {r4(vFF+mat*8+part*4)}, {cin}")
    while kv_issued[0] < k_target: issue_kv_load()
    stamp("q_mfma_done")
    g(f"v_and_b32 v{vT}, 7, v{vLANE}\nv_lshlrev_b32 v{vT}, 5, v{vT}")
    g(f"v_and_b32 v{vT+1}, 1, v{vG}\nv_lshl_add_u32 v{vT}, v{vT+1}, 4, v{vT}")
    g.nop(8)
    g("s_mov_b32 exec_lo, 0x00ff00ff\ns_mov_b32 exec_hi, 0xff00ff00")
    for be in range(4):
        for mat in range(2):
            for r in range(4):
                g(f"ds_add_f32 v{vT}, v{vDF+(be*2+mat)*4+r} offset:{L_GU + (be*128+mat*64+r)*4}")
    g("s_mov_b32 exec_lo, -1\ns_mov_b32 exec_hi, 0")
    g(f"s_lshl_b32 {sT0}, {sW}, 9")
    g(f"v_lshlrev_b32 v{vT+1}, 5, v{vC}\nv_lshl_add_u32 v{vT+1}, v{vG}, 4, v{vT+1}\nv_add_u32 v{vT+1}, {sT0}, v{vT+1}")
    g(f"ds_write_b128 v{vT+1}, {r4(vD)} offset:{L_QP}")
    g("s_mov_b64 exec, -1")
    g("s_waitcnt lgkmcnt(0)\ns_barrier")
    g(f"v_lshlrev_b32 v{vT}, 3, v{vLANE}")
    for w_ in range(8):
        g(f"ds_read_b64 {r2(vA+2*w_)}, v{vT} offset:{L_QP + w_*512}")
    g(f"s_cmp_lg_u32 {sW}, 7\ns_cbranch_scc1 L_nopub\ns_cmp_eq_u32 {sUNIT}, 0\ns_cbranch_scc1 L_nopub")
    t = vT + 2
    g(f"v_lshlrev_b32 v{t}, 4, v{vLANE}")
    g(f"ds_read_b128 {r4(vXQ)}, v{t} offset:{L_GU}\nds_read_b128 {r4(vXQ+4)}, v{t} offset:{L_GU+1024}")
    g(f"v_lshrrev_b32 v{t+1}, 5, v{vLANE}\nv_mul_u32_u24 v{t+1}, {27*4096}, v{t+1}\nv_and_b32 v{t+2}, 31, v{vLANE}\nv_lshl_add_u32 v{t+1}, v{t+2}, 4, v{t+1}")
    g(f"s_add_u32 {sT0}, {sGUP}, {2*27*4096}")
    g("s_waitcnt lgkmcnt(0)")
    g(f"buffer_store_dwordx4 {r4(vXQ)}, v{t+1}, {sWS}, {sGUP} offen sc1")
    g(f"buffer_store_dwordx4 {r4(vXQ+4)}, v{t+1}, {sWS}, {sT0} offen sc1")
    g("L_nopub:")
    g("s_waitcnt lgkmcnt(0)")
    for k in (4, 2, 1):
        for i in range(k):
            g(f"v_pk_add_f32 {r2(vA+2*i)}, {r2(vA+2*i)}, {r2(vA+2*(i+k))}")
    g(f"v_cvt_pk_bf16_f32 v{vA}, v{vA}, v{vA+1}")
    g(f"s_lshl_b32 {sT0}, {sW}, 8\nv_lshl_add_u32 v{vT}, v{vLANE}, 2, {sT0}")
    g(f"ds_write_b32 v{vT}, v{vA} offset:{L_QS}")
    g(f"v_lshl_add_u32 v{vT+1}, v{vC}, 4, {sT0}")
    g("s_waitcnt lgkmcnt(0)")
    g(f"ds_read_b128 {r4(vQ[0])}, v{vT+1} offset:{L_QS}")
    g("s_waitcnt lgkmcnt(0)")
    stamp("q_ready")
    if P["dump"]:
        pass

    T_ = [vT, vT + 1, vT + 2, vT + 3]
    for t_ in range(16):
        rb = tile_base(t_)
        g.wait(("kv", 4 * t_ + 3))
        for j in range(4):
            for r in range(4):
                cin = "0" if j == 0 else f"v{T_[r]}"
                g(f"v_dot2_f32_bf16 v{T_[r]}, v{rb+4*r+j}, v{vQ[j]}, {cin}")
        while kv_issued[0] < min(128, 4 * (t_ + P["ahead"] + 1)): issue_kv_load()
        allreduce_row("v_add_f32", T_)
        g(f"s_lshl_b64 {sMASK}, {sMASK0}, {t_}")
        for r in range(4):
            g(f"v_cndmask_b32 v{vS[r]}, v{vS[r]}, v{T_[r]}, {sMASK}")
    stamp("k_done")
    vCNT = vT + 12; vMLP = vT + 10; vGU = vT + 13
    g.vm("cnt", f"buffer_load_dword v{vCNT}, off, {sDBG}, 0 sc1")
    for r in range(4): bf16r(vS[r], vS[r])
    for r in range(4): g(f"v_mul_f32 v{vS[r]}, {SCALE:#x}, v{vS[r]}")
    for r in range(4): bf16r(vS[r], vS[r])
    m = vT; l = vT + 1; tm = vT + 2
    g(f"v_max3_f32 v{m}, v{vS[0]}, v{vS[1]}, v{vS[2]}\nv_max_f32 v{m}, v{m}, v{vS[3]}")
    allreduce64("v_max_f32", m, tm)
    for r in range(4): g(f"v_sub_f32 v{vS[r]}, v{vS[r]}, v{m}")
    for r in range(4): g(f"v_mul_f32 v{vS[r]}, {LOG2E:#x}, v{vS[r]}")
    for r in range(4): g(f"v_exp_f32 v{vS[r]}, v{vS[r]}")
    g.nop(1)
    g(f"v_add_f32 v{l}, v{vS[0]}, v{vS[1]}\nv_add_f32 v{tm}, v{vS[2]}, v{vS[3]}\nv_add_f32 v{l}, v{l}, v{tm}")
    allreduce64("v_add_f32", l, tm)
    for r in range(4): g(f"v_cvt_pk_bf16_f32 v{vS[r]}, v{vS[r]}, v{vS[r]}")
    g(f"s_lshl_b32 {sT0}, {sW}, 3\nv_mov_b32 v{tm}, {sT0}\nv_mov_b32 v{tm+1}, 0\nv_mov_b32 v{tm+2}, 1")
    g("s_mov_b64 exec, 1")
    g(f"ds_write_b64 v{tm}, {r2(m)} offset:{L_ST}")
    g(f"ds_add_rtn_u32 v{tm+3}, v{tm+1}, v{tm+2} offset:{L_CNT}")
    g("s_mov_b64 exec, -1")
    g("s_waitcnt lgkmcnt(0)")
    g(f"v_readfirstlane_b32 {sT0}, v{tm+3}")
    g.nop(2)
    g(f"s_cmp_lg_u32 {sT0}, 7\ns_cbranch_scc1 L_nopubml")
    def wg_stats(st, M, Lr, e0, e1, tmp):
        g(f"v_max_f32 v{M}, v{st}, v{st+2}"); g.nop(2)
        allreduce_row("v_max_f32", [M], steps=(4, 8))
    a0 = vA
    g(f"v_lshrrev_b32 v{a0+8}, 2, v{vC}\nv_lshlrev_b32 v{a0+8}, 4, v{a0+8}")
    g(f"ds_read_b128 {r4(a0)}, v{a0+8} offset:{L_ST}")
    g("s_waitcnt lgkmcnt(0)")
    wg_stats(a0, a0 + 4, None, None, None, None)
    g(f"v_sub_f32 v{a0+5}, v{a0}, v{a0+4}\nv_sub_f32 v{a0+6}, v{a0+2}, v{a0+4}")
    g(f"v_mul_f32 v{a0+5}, {LOG2E:#x}, v{a0+5}\nv_mul_f32 v{a0+6}, {LOG2E:#x}, v{a0+6}")
    g(f"v_exp_f32 v{a0+5}, v{a0+5}\nv_exp_f32 v{a0+6}, v{a0+6}"); g.nop(1)
    g(f"v_mul_f32 v{a0+5}, v{a0+5}, v{a0+1}\nv_fmac_f32 v{a0+5}, v{a0+6}, v{a0+3}"); g.nop(2)
    allreduce_row("v_add_f32", [a0 + 5], steps=(4, 8))
    g("s_mov_b64 exec, 1")
    g(f"buffer_store_dwordx2 {r2(a0+4)}, off, {sWS}, {sMLO} sc1")
    g("s_mov_b64 exec, -1")
    g("L_nopubml:")
    stamp("softmax_done")

    wo_issued = [0]
    def issue_wo():
        n = wo_issued[0]
        if n >= 25: return
        if n < 20:
            rg, ct = n // 5, n % 5
            if ct == 0: g(f"s_add_u32 {sT2}, {sWOB}, {rg*1280}")
            g.vm(("wo", n), f"buffer_load_dwordx4 {r4(WOA+4*n)}, v{vOWO}, {sWO}, {sT2} offen offset:{ct*256} {nt}")
        else:
            ct = n - 20
            g.vm(("wo", n), f"buffer_load_dwordx4 {r4(WOA+4*n)}, v{vOWD}, {sWD}, {sWDB} offen offset:{ct*256} {nt}")
        wo_issued[0] += 1
    def spin_check(name, cond_code, reload_code):
        lo, lk = g.label(name + "_spin"), g.label(name + "_ok")
        g(cond_code)
        g(f"s_cbranch_scc1 {lk}")
        g(f"s_mov_b32 {sSPIN}, {P['spin_max']}")
        g(f"{lo}:")
        g("s_sleep 8")
        g(reload_code)
        g("s_waitcnt vmcnt(0)")
        g(f"s_sub_u32 {sSPIN}, {sSPIN}, 1\ns_cmp_eq_u32 {sSPIN}, 0\ns_cbranch_scc1 {lk}")
        g(cond_code)
        g(f"s_cbranch_scc0 {lo}")
        g(f"{lk}:")
    for tv in range(16):
        T = 16 + tv
        rb = tile_base(T)
        for r in range(4):
            for w4 in range(4):
                g(f"v_and_b32_dpp v{vA+4*r+w4}, v{vS[r]}, v{vM[w4]} row_newbcast:{tv} row_mask:0xf bank_mask:0xf")
        g.wait(("kv", 4 * T + 3))
        for r in range(4):
            cin = "0" if (tv == 0 and r == 0) else r4(vD)
            g(f"v_mfma_f32_16x16x32_bf16 {r4(vD)}, {r4(vA+4*r)}, {r4(rb+4*r)}, {cin}")
        while kv_issued[0] < min(128, 4 * (T + P["ahead"] + 1)): issue_kv_load()
        if tv >= 1:
            issue_wo(); issue_wo()
        if tv == 1:
            g.wait("cnt")
            cond = f"v_readfirstlane_b32 {sT0}, v{vCNT}\ns_nop 2\ns_cmp_eq_u32 {sT0}, 256"
            g.nop(1)
            spin_check("cnt", cond, f"buffer_load_dword v{vCNT}, off, {sDBG}, 0 sc1")
            g(f"v_and_b32 v{vT}, 7, v{vC}\nv_lshlrev_b32 v{vT}, 9, v{vT}\nv_lshrrev_b32 v{vT+1}, 3, v{vC}")
            g(f"v_lshl_add_u32 v{vT}, v{vT+1}, 8, v{vT}\nv_lshl_add_u32 v{vT+4}, v{vG}, 2, v{vT}")
            g.vm("gu", f"buffer_load_dword v{vGU}, v{vT+4}, {sWS}, {sGUC} offen sc1")
        if tv == 4:
            g.wait("gu")
            cond = f"v_cmp_eq_u32 vcc, -1, v{vGU}\ns_nop 4\ns_cmp_eq_u64 vcc, 0"
            spin_check("gu", cond, f"buffer_load_dword v{vGU}, v{vT+4}, {sWS}, {sGUC} offen sc1")
            x0 = vT; x1 = vT + 1; x2 = vT + 2; x3 = vT + 3
            g.nop(2)
            g(f"v_add_f32_dpp v{vGU}, v{vGU}, v{vGU} quad_perm:[1,0,3,2] row_mask:0xf bank_mask:0xf"); g.nop(2)
            g(f"v_add_f32_dpp v{vGU}, v{vGU}, v{vGU} quad_perm:[2,3,0,1] row_mask:0xf bank_mask:0xf"); g.nop(2)
            g(f"v_add_f32_dpp v{vGU}, v{vGU}, v{vGU} row_half_mirror row_mask:0xf bank_mask:0xf"); g.nop(2)
            g(f"v_mov_b32_dpp v{x0}, v{vGU} row_ror:8 row_mask:0xf bank_mask:0xf")
            g(f"v_cmp_gt_u32 vcc, 8, v{vC}"); g.nop(2)
            g(f"v_cndmask_b32 v{x1}, v{x0}, v{vGU}, vcc")
            g(f"v_cndmask_b32 v{x2}, v{vGU}, v{x0}, vcc")
            bf16r(x1, x1); bf16r(x2, x2)
            g(f"v_mul_f32 v{x0}, v{x1}, v{x1}\nv_mul_f32 v{x0}, v{x0}, v{x1}")
            g(f"v_mul_f32 v{x0}, 0x3d372713, v{x0}\nv_add_f32 v{x0}, v{x0}, v{x1}")
            g(f"v_mul_f32 v{x0}, 0x40135761, v{x0}")
            g(f"v_exp_f32 v{x0}, v{x0}"); g.nop(1)
            g(f"v_add_f32 v{x0}, 1.0, v{x0}\nv_rcp_f32 v{x0}, v{x0}"); g.nop(1)
            g(f"v_sub_f32 v{x0}, 1.0, v{x0}\nv_mul_f32 v{x0}, v{x0}, v{x1}")
            bf16r(x0, x0)
            g(f"v_mul_f32 v{x0}, v{x0}, v{x2}")
            g(f"v_cvt_pk_bf16_f32 v{vGU}, v{x0}, v{x0}")
        if tv == 10:
            g.vm("ml", f"buffer_load_dwordx2 {r2(vMLP)}, off, {sWS}, {sMLP} sc1")
    while wo_issued[0] < 25: issue_wo()
    stamp("v_done")
    g.wait("ml")
    cond = f"v_cmp_eq_u32 vcc, -1, v{vMLP}\nv_cmp_eq_u32 s[6:7], -1, v{vMLP+1}\ns_nop 4\ns_or_b64 vcc, vcc, s[6:7]\ns_cmp_eq_u64 vcc, 0"
    spin_check("ml", cond, f"buffer_load_dwordx2 {r2(vMLP)}, off, {sWS}, {sMLP} sc1")

    g.nop(8)
    g("s_mov_b32 exec_lo, -1\ns_mov_b32 exec_hi, 0")
    g(f"s_lshl_b32 {sT0}, {sW}, 9")
    g(f"v_lshlrev_b32 v{vT+1}, 5, v{vC}\nv_lshl_add_u32 v{vT+1}, v{vG}, 4, v{vT+1}\nv_add_u32 v{vT+1}, {sT0}, v{vT+1}")
    g(f"ds_write_b128 v{vT+1}, {r4(vD)} offset:{L_OP}")
    g("s_mov_b64 exec, -1")
    a0 = vA
    g(f"v_lshrrev_b32 v{a0+8}, 2, v{vC}\nv_lshlrev_b32 v{a0+9}, 4, v{a0+8}")
    g(f"v_and_b32 v{a0+10}, 3, v{vC}\nv_lshl_add_u32 v{a0+10}, v{vG}, 2, v{a0+10}\nv_lshlrev_b32 v{a0+10}, 2, v{a0+10}")
    g(f"v_lshl_add_u32 v{a0+10}, v{a0+8}, 10, v{a0+10}\ns_lshl_b32 {sT0}, {sW}, 6\nv_add_u32 v{a0+10}, {sT0}, v{a0+10}")
    g("s_waitcnt lgkmcnt(0)\ns_barrier")
    stamp("bar3")
    g(f"ds_read_b128 {r4(a0)}, v{a0+9} offset:{L_ST}")
    g(f"ds_read_b32 v{a0+11}, v{a0+10} offset:{L_OP}\nds_read_b32 v{a0+12}, v{a0+10} offset:{L_OP+512}")
    g("s_waitcnt lgkmcnt(0)")
    M = a0 + 4
    g(f"v_max_f32 v{M}, v{a0}, v{a0+2}"); g.nop(2)
    allreduce_row("v_max_f32", [M], steps=(4, 8))
    g(f"v_max_f32 v{M}, v{M}, v{vMLP}")
    g(f"v_sub_f32 v{a0+5}, v{a0}, v{M}\nv_sub_f32 v{a0+6}, v{a0+2}, v{M}\nv_sub_f32 v{a0+7}, v{vMLP}, v{M}")
    for i in (5, 6, 7): g(f"v_mul_f32 v{a0+i}, {LOG2E:#x}, v{a0+i}")
    for i in (5, 6, 7): g(f"v_exp_f32 v{a0+i}, v{a0+i}")
    g.nop(1)
    Lr = a0 + 13; O = a0 + 14
    g(f"v_mul_f32 v{Lr}, v{a0+5}, v{a0+1}\nv_mul_f32 v{O}, v{a0+5}, v{a0+11}")
    g(f"v_fmac_f32 v{Lr}, v{a0+6}, v{a0+3}\nv_fmac_f32 v{O}, v{a0+6}, v{a0+12}")
    g.nop(1)
    for st in (4, 8):
        g(f"v_add_f32_dpp v{Lr}, v{Lr}, v{Lr} row_ror:{st} row_mask:0xf bank_mask:0xf")
        g(f"v_add_f32_dpp v{O}, v{O}, v{O} row_ror:{st} row_mask:0xf bank_mask:0xf")
        g.nop(1)
    g(f"v_fmac_f32 v{Lr}, v{a0+7}, v{vMLP+1}")
    g(f"v_rcp_f32 v{Lr}, v{Lr}"); g.nop(1)
    g(f"v_mul_f32 v{O}, v{O}, v{Lr}")
    g(f"v_cvt_pk_bf16_f32 v{vT}, v{O}, v{O}")
    g.nop(2)
    for rg in range(4):
        for w4 in range(4):
            g(f"v_and_b32_dpp v{vA+4*rg+w4}, v{vT}, v{vM[w4]} row_newbcast:{rg} row_mask:0xf bank_mask:0xf")
    for w4 in range(4):
        g(f"v_and_b32 v{vT+4+w4}, v{vGU}, v{vM[w4]}")
    g.wait(("wo", 24))
    vY = RING
    for rg in range(4):
        for ct in range(5):
            cin = "0" if rg == 0 else r4(vY + 4 * ct)
            g(f"v_mfma_f32_16x16x32_bf16 {r4(vY+4*ct)}, {r4(vA+4*rg)}, {r4(WOA+4*(rg*5+ct))}, {cin}")
    for ct in range(5):
        g(f"v_mfma_f32_16x16x32_bf16 {r4(vY+4*ct)}, {r4(vT+4)}, {r4(WOA+4*(20+ct))}, {r4(vY+4*ct)}")
    g(f"s_mul_i32 {sT0}, {sW}, 2560")
    g(f"v_lshlrev_b32 v{vT+1}, 5, v{vC}\nv_lshl_add_u32 v{vT+1}, v{vG}, 4, v{vT+1}\nv_add_u32 v{vT+1}, {sT0}, v{vT+1}")
    g.nop(8)
    g("s_mov_b32 exec_lo, -1\ns_mov_b32 exec_hi, 0")
    for ct in range(5):
        g(f"ds_write_b128 v{vT+1}, {r4(vY+4*ct)} offset:{L_YP + ct*512}")
    g("s_mov_b64 exec, -1")
    g("s_waitcnt lgkmcnt(0)\ns_barrier")
    stamp("bar4")
    g(f"s_cmp_ge_u32 {sW}, 3\ns_cbranch_scc1 L_cons")
    g(f"v_cmp_gt_u32 vcc, 160, v0\ns_and_saveexec_b64 {sEXEC}, vcc\ns_cbranch_execz L_fin")
    g(f"v_lshlrev_b32 v{vT}, 4, v0")
    yb = RING + 32
    for w_ in range(8):
        g(f"ds_read_b128 {r4(yb+4*w_)}, v{vT} offset:{L_YP + w_*2560}")
    g("s_waitcnt lgkmcnt(0)")
    for k in (4, 2, 1):
        for i in range(k):
            g(f"v_pk_add_f32 {r2(yb+4*i)}, {r2(yb+4*i)}, {r2(yb+4*(i+k))}")
            g(f"v_pk_add_f32 {r2(yb+4*i+2)}, {r2(yb+4*i+2)}, {r2(yb+4*(i+k)+2)}")
    g(f"buffer_store_dwordx4 {r4(yb)}, v{vT}, {sWS}, {sYO} offen sc1")
    g("s_branch L_fin")
    g("L_cons:")
    g(f"s_cmp_lg_u32 {sW}, 3\ns_cbranch_scc1 L_fin\ns_cmp_ge_u32 {sSLOT}, 40\ns_cbranch_scc1 L_fin")
    cb = RING + 32
    g(f"v_lshrrev_b32 v{vT}, 2, v{vLANE}\nv_mul_u32_u24 v{vT}, 2560, v{vT}\nv_and_b32 v{vT+1}, 3, v{vLANE}\nv_lshl_add_u32 v{vT}, v{vT+1}, 4, v{vT}")
    g(f"s_mul_i32 {sT0}, {sB}, {64*2560}\ns_lshl_b32 {sT1}, {sSLOT}, 6\ns_add_u32 {sT0}, {sT0}, {sT1}")
    g(f"s_mul_i32 {sT1}, {sB}, 1280\ns_lshl_b32 {sT2}, {sSLOT}, 5\ns_add_u32 {sT1}, {sT1}, {sT2}")
    g(f"v_lshlrev_b32 v{vT+2}, 3, v{vT+1}")
    g(f"buffer_load_dwordx2 {r2(vT+4)}, v{vT+2}, {sX}, {sT1} offen")
    g(f"s_mov_b32 {sSPIN}, {P['spin_max']}")
    g("L_poll:")
    for jj in range(4):
        g(f"s_add_u32 {sT2}, {sT0}, {jj*16*2560}")
        g(f"buffer_load_dwordx4 {r4(cb+4*jj)}, v{vT}, {sWS}, {sT2} offen sc1")
    g("s_waitcnt vmcnt(0)")
    mx = vT + 6
    g(f"v_max3_u32 v{mx}, v{cb}, v{cb+1}, v{cb+2}")
    for i in range(3, 15, 2):
        g(f"v_max3_u32 v{mx}, v{mx}, v{cb+i}, v{cb+i+1}")
    g(f"v_max_u32 v{mx}, v{mx}, v{cb+15}")
    g(f"v_cmp_eq_u32 vcc, -1, v{mx}")
    g("s_nop 4\ns_cmp_eq_u64 vcc, 0\ns_cbranch_scc1 L_polled")
    g(f"s_sub_u32 {sSPIN}, {sSPIN}, 1\ns_cmp_eq_u32 {sSPIN}, 0\ns_cbranch_scc1 L_polled")
    g("s_sleep 4\ns_branch L_poll")
    g("L_polled:")
    for k in (2, 1):
        for i in range(k):
            g(f"v_pk_add_f32 {r2(cb+4*i)}, {r2(cb+4*i)}, {r2(cb+4*(i+k))}")
            g(f"v_pk_add_f32 {r2(cb+4*i+2)}, {r2(cb+4*i+2)}, {r2(cb+4*(i+k)+2)}")
    g.nop(2)
    allreduce_row("v_add_f32", [cb, cb + 1, cb + 2, cb + 3], steps=(4, 8))
    for i in range(4):
        allreduce_cross("v_add_f32", cb + i, vT + 6)
    g(f"v_lshlrev_b32 v{vT+6}, 16, v{vT+4}\nv_and_b32 v{vT+7}, 0xffff0000, v{vT+4}\nv_lshlrev_b32 v{vT+8}, 16, v{vT+5}\nv_and_b32 v{vT+9}, 0xffff0000, v{vT+5}")
    for i in range(4): g(f"v_add_f32 v{cb+i}, v{cb+i}, v{vT+6+i}")
    g(f"v_cvt_pk_bf16_f32 v{cb}, v{cb}, v{cb+1}\nv_cvt_pk_bf16_f32 v{cb+1}, v{cb+2}, v{cb+3}")
    g("s_mov_b64 exec, 0xf")
    g(f"buffer_store_dwordx2 {r2(cb)}, v{vT+2}, {sOUT}, {sT1} offen")
    g("L_fin:")
    if P["stamp"]:
        g("s_mov_b64 exec, -1")
        stamp("end")
        g(f"s_getreg_b32 s92, hwreg(HW_REG_XCC_ID)\nv_writelane_b32 v252, s92, 31")
        g(f"s_lshl_b32 {sT0}, s2, 3\ns_add_u32 {sT0}, {sT0}, {sW}\ns_lshl_b32 {sT0}, {sT0}, 7\ns_add_u32 {sT0}, {sT0}, {WS_STAMP}")
        g(f"v_lshlrev_b32 v{vT}, 2, v{vLANE}\ns_mov_b32 exec_lo, -1\ns_mov_b32 exec_hi, 0")
        g(f"buffer_store_dword v252, v{vT}, {sWS}, {sT0} offen")
    g("L_end:\ns_endpgm")

    nv = 256 if P["stamp"] else NVGPR
    tail = ['.section .rodata,"a"', ".p2align 6", f".amdhsa_kernel {KN}_kernel",
            f"  .amdhsa_next_free_vgpr {nv}", "  .amdhsa_next_free_sgpr 96", f"  .amdhsa_accum_offset {(nv+3)//4*4}",
            "  .amdhsa_group_segment_fixed_size 0", "  .amdhsa_kernarg_size 96", "  .amdhsa_user_sgpr_count 2",
            "  .amdhsa_user_sgpr_kernarg_segment_ptr 1", "  .amdhsa_system_sgpr_workgroup_id_x 1",
            "  .amdhsa_float_denorm_mode_32 3", "  .amdhsa_float_denorm_mode_16_64 3",
            ".end_amdhsa_kernel"]
    return "\n".join(hdr + g.L + tail) + "\n", STAMPS

if __name__ == "__main__":
    kw = {}
    out = "cdna_kernels/" + KN + ".s"
    for a in sys.argv[1:]:
        k, v = a.split("=")
        if k == "out": out = v
        else: kw[k] = int(v) if v.lstrip("-").isdigit() else v
    s, st = gen(**kw)
    open(out, "w").write(s)
    print("wrote", out, len(s), "bytes; stamps:", st)
```

```python
import sys

KN = "parallel_sum__gqa_block_cached__geglu_ffn__decode"

class G:
    def __init__(self):
        self.L = []
        self.q = []
        self.uid = 0
    def __call__(self, s):
        for ln in s.split("\n"):
            self.L.append("  " + ln.strip() if ln.strip() and not ln.strip().endswith(":") else ln.strip())
    def c(self, s):
        self.L.append("  ; " + s)
    def vm(self, tag, s):
        self(s); self.q.append(tag)
    def wait(self, tag):
        if tag not in self.q: return
        idx = len(self.q) - 1 - self.q[::-1].index(tag)
        n = len(self.q) - idx - 1
        assert n <= 63, n
        self(f"s_waitcnt vmcnt({n})")
        self.q = self.q[idx + 1:]
    def label(self, base):
        self.uid += 1
        return f"L_{base}_{self.uid}"
    def nop(self, n):
        while n > 0:
            k = min(n, 16); self(f"s_nop {k-1}"); n -= k

DEFAULTS = dict(
    ld_nt="nt",
    hold_tiles=6,
    ahead=2,
    wq_ahead=4,
    stamp=0,
    dump=0,
    spin_max=40000,
)

WS_Y = 0
WS_ML = 0xA0000
WS_GU = 0xB0000
WS_SIZE = 0x200000
WS_STAMP = 0x180000
WS_DUMP = 0x190000
L_XN = 0
L_ZERO = 10240
L_GU = 10304
L_ST = 12352
L_CNT = 12416
L_QP = 14336
L_QS = 18432
L_YP = 20480
L_OP = 40960
L_FP = 45056
LDS_BYTES = 45056 + 32768

sX, sK, sV, sWQ, sWO, sWG, sWU, sWD, sOUT, sDBG, sWS = [f"s[{28+4*i}:{31+4*i}]" for i in range(11)]
sW, sH, sB, sHALF, sSLOT, sKVB, sWQB, sWOB, sWDB, sFFB = [f"s{72+i}" for i in range(10)]
sT0, sT1, sT2 = "s82", "s83", "s85"
sMASK0 = "s[4:5]"
sMASK = "s[6:7]"
sEXEC = "s[8:9]"
sGUC = "s10"
sMLP = "s11"
sMLO = "s12"
sYO = "s13"
sGUP = "s14"
sUNIT = "s15"
sSPIN = "s16"
sRB = "s17"
sST0 = 18

vTID, vLANE, vC, vG = 0, 1, 2, 3
vM = [4, 5, 6, 7]
vOKV, vOWQ, vOWO, vOWD, vOFA, vOFB = 8, 9, 10, 11, 12, 13
vQ = [14, 15, 16, 17]
vS = [18, 19, 20, 21]
vD = 22
vA = 26
vT = 42
RING = 56
WOA = 152
vWQR = 152
vFF = 176
vXQ = 192
vXF = 212
vDF = 220
NVGPR = 252

def r4(b): return f"v[{b}:{b+3}]"
def r2(b): return f"v[{b}:{b+1}]"

LOG2E = 0x3FB8AA3B
SCALE = 0x3DB504F3

def gen(**kw):
    P = dict(DEFAULTS); P.update(kw)
    nt = P["ld_nt"]
    g = G()
    hdr = []
    hdr.append("; fused LayerNorm + GQA decode attention (split-KV, 2 halves per (b,h)) + out-projection + GeGLU FFN")
    hdr.append(f"; @launch grid=(256,1,1) block=(512,1,1) lds={LDS_BYTES}")
    hdr.append('.amdgcn_target "amdgcn-amd-amdhsa--gfx950"')
    hdr.append(".text")
    hdr.append(f".globl {KN}_kernel")
    hdr.append(".p2align 8")
    hdr.append(f".type {KN}_kernel,@function")
    hdr.append(f"{KN}_kernel:")

    nstamp = [0]
    def stamp(name):
        if P["stamp"]:
            i = nstamp[0]; nstamp[0] += 1
            g(f"s_memrealtime s[92:93]\ns_waitcnt lgkmcnt(0)\nv_writelane_b32 v252, s92, {i}")
            STAMPS.append(name)
    STAMPS = []

    def allreduce_row(op, regs, steps=(8, 4, 2, 1)):
        for st in steps:
            for r in regs:
                g(f"{op}_dpp v{r}, v{r}, v{r} row_ror:{st} row_mask:0xf bank_mask:0xf")
            if len(regs) < 3: g.nop(3 - len(regs))
    def allreduce_cross(op, r, t):
        g(f"v_mov_b32 v{t}, v{r}"); g.nop(2)
        g(f"v_permlane16_swap_b32 v{r}, v{t}"); g.nop(1)
        g(f"{op} v{r}, v{r}, v{t}")
        g(f"v_mov_b32 v{t}, v{r}"); g.nop(2)
        g(f"v_permlane32_swap_b32 v{r}, v{t}"); g.nop(1)
        g(f"{op} v{r}, v{r}, v{t}")
    def allreduce64(op, r, t):
        g.nop(2)
        allreduce_row(op, [r])
        allreduce_cross(op, r, t)
    def bf16r(dst, src):
        g(f"v_cvt_pk_bf16_f32 v{dst}, v{src}, v{src}")
        g(f"v_and_b32 v{dst}, 0xffff0000, v{dst}")

    g("s_cmp_ge_u32 s2, 256\ns_cbranch_scc1 L_end")
    g("s_load_dwordx16 s[4:19], s[0:1], 0\ns_load_dwordx8 s[20:27], s[0:1], 64")
    if P["stamp"]:
        g("v_mov_b32 v252, 0")
        stamp("start")
    g(f"v_and_b32 v{vLANE}, 63, v0\nv_lshrrev_b32 v{vT}, 6, v0")
    g(f"v_and_b32 v{vC}, 15, v{vLANE}\nv_lshrrev_b32 v{vG}, 4, v{vLANE}")
    g(f"v_readfirstlane_b32 {sW}, v{vT}")
    g(f"s_and_b32 {sT0}, s2, 7\ns_lshr_b32 {sT1}, s2, 3")
    g(f"s_lshl_b32 {sH}, {sT0}, 2\ns_lshr_b32 {sT2}, {sT1}, 3\ns_add_u32 {sH}, {sH}, {sT2}")
    g(f"s_and_b32 {sB}, {sT1}, 7\ns_and_b32 {sHALF}, {sB}, 1\ns_lshr_b32 {sB}, {sB}, 1")
    g(f"s_lshl_b32 {sSLOT}, {sH}, 1\ns_add_u32 {sSLOT}, {sSLOT}, {sHALF}")
    g(f"v_and_b32 v{vT}, 7, v{vLANE}")
    g(f"v_and_b32 v{vT+1}, 1, v{vT}\nv_lshlrev_b32 v{vT+1}, 4, v{vT+1}")
    g(f"v_mov_b32 v{vT+2}, 0xffff\nv_lshlrev_b32 v{vT+2}, v{vT+1}, v{vT+2}")
    g(f"v_lshrrev_b32 v{vT+3}, 1, v{vT}")
    for w in range(4):
        g(f"v_cmp_eq_u32 vcc, {w}, v{vT+3}"); g.nop(2)
        g(f"v_cndmask_b32 v{vM[w]}, 0, v{vT+2}, vcc")
    g(f"v_lshlrev_b32 v{vT}, 4, v{vC}")
    g(f"v_lshl_add_u32 v{vOKV}, v{vG}, 10, v{vT}")
    g(f"v_lshl_add_u32 v{vOWQ}, v{vG}, 13, v{vT}")
    g(f"v_mul_u32_u24 v{vOWO}, 5120, v{vG}\nv_add_u32 v{vOWO}, v{vOWO}, v{vT}")
    g(f"v_mul_u32_u24 v{vOWD}, 1280, v{vG}\nv_add_u32 v{vOWD}, v{vOWD}, v{vT}")
    g(f"v_lshrrev_b32 v{vT+1}, 3, v{vLANE}\nv_and_b32 v{vT+2}, 7, v{vLANE}\nv_lshlrev_b32 v{vT+2}, 4, v{vT+2}")
    g(f"v_mul_u32_u24 v{vOFA}, 3456, v{vT+1}\nv_add_u32 v{vOFA}, v{vOFA}, v{vT+2}")
    g(f"v_add_u32 v{vOFB}, {8*3456}, v{vOFA}")
    g(f"v_cmp_gt_u32 vcc, 2, v{vT+1}\nv_mov_b32 v{vT+3}, 0x40000000"); g.nop(1)
    g(f"v_cndmask_b32 v{vOFB}, v{vT+3}, v{vOFB}, vcc")
    g("s_waitcnt lgkmcnt(0)")
    ptr = {sX: 4, sK: 6, sV: 8, sWQ: 10, sWO: 12, sWG: 16, sWU: 18, sWD: 20, sOUT: 22, sDBG: 24, sWS: 26}
    size = {sX: 5120, sK: 0x8000000, sV: 0x8000000, sWQ: 5242880, sWO: 5242880, sWG: 2211840, sWU: 2211840,
            sWD: 2211840, sOUT: 5120, sDBG: 256, sWS: WS_SIZE}
    for srd, p in ptr.items():
        b = int(srd[2:srd.index(":")])
        g(f"s_mov_b32 s{b}, s{p}\ns_and_b32 s{b+1}, s{p+1}, 0xffff\ns_mov_b32 s{b+2}, {size[srd]}\ns_mov_b32 s{b+3}, 0x20000")
    g(f"s_lshl_b32 {sT0}, {sB}, 5\ns_add_u32 {sT0}, {sT0}, {sH}")
    g(f"s_lshl_b32 {sKVB}, {sT0}, 20\ns_lshl_b32 {sT1}, {sHALF}, 19\ns_add_u32 {sKVB}, {sKVB}, {sT1}")
    g(f"s_lshl_b32 {sT1}, {sW}, 12\ns_add_u32 {sKVB}, {sKVB}, {sT1}")
    g(f"s_lshl_b32 {sT1}, {sT0}, 1\ns_add_u32 {sT2}, {sT1}, {sHALF}\ns_lshl_b32 {sMLO}, {sT2}, 7\ns_add_u32 {sMLO}, {sMLO}, {WS_ML}")
    g(f"s_xor_b32 {sT2}, {sT2}, 1\ns_lshl_b32 {sMLP}, {sT2}, 7\ns_add_u32 {sMLP}, {sMLP}, {WS_ML}")
    g(f"s_mul_i32 {sWQB}, {sW}, {80*8192}\ns_lshl_b32 {sT1}, {sH}, 8\ns_add_u32 {sWQB}, {sWQB}, {sT1}")
    g(f"s_lshl_b32 {sT1}, {sH}, 7\ns_lshl_b32 {sT2}, {sW}, 4\ns_add_u32 {sT1}, {sT1}, {sT2}\ns_mul_i32 {sWOB}, {sT1}, 1280")
    g(f"s_lshl_b32 {sT1}, {sSLOT}, 5\ns_lshl_b32 {sT2}, {sW}, 2\ns_add_u32 {sT1}, {sT1}, {sT2}\ns_mul_i32 {sWDB}, {sT1}, 1280")
    g(f"s_lshl_b32 {sT1}, {sB}, 6\ns_add_u32 {sT1}, {sT1}, {sSLOT}\ns_mul_i32 {sYO}, {sT1}, 2560")
    g(f"s_lshr_b32 {sT0}, s2, 3\ns_and_b32 {sRB}, s2, 7")
    g(f"s_mul_i32 {sT1}, {sRB}, 80\ns_mul_i32 {sT2}, {sW}, 10\ns_add_u32 {sT1}, {sT1}, {sT2}\ns_mul_i32 {sFFB}, {sT1}, 3456")
    g(f"s_lshl_b32 {sT1}, {sT0}, 7\ns_add_u32 {sFFB}, {sFFB}, {sT1}")
    g(f"s_lshl_b32 {sGUP}, {sT0}, 12\ns_lshl_b32 {sT1}, {sRB}, 9\ns_add_u32 {sGUP}, {sGUP}, {sT1}\ns_add_u32 {sGUP}, {sGUP}, {WS_GU}")
    g(f"s_cmp_lt_u32 s2, 216\ns_cselect_b32 {sUNIT}, 1, 0\ns_cselect_b32 {sFFB}, {sFFB}, 0x20000000")
    g(f"s_mul_i32 {sT0}, {sB}, 27\ns_lshr_b32 {sT1}, {sSLOT}, 1\ns_add_u32 {sT0}, {sT0}, {sT1}\ns_lshl_b32 {sGUC}, {sT0}, 12")
    g(f"s_and_b32 {sT1}, {sSLOT}, 1\ns_lshl_b32 {sT1}, {sT1}, 7\ns_add_u32 {sGUC}, {sGUC}, {sT1}")
    g(f"s_lshl_b32 {sT1}, {sW}, 4\ns_add_u32 {sGUC}, {sGUC}, {sT1}\ns_add_u32 {sGUC}, {sGUC}, {WS_GU}")
    g(f"s_cmp_lt_u32 {sSLOT}, 54\ns_cselect_b32 {sGUC}, {sGUC}, 0x20000000")
    g("s_mov_b32 s4, 0x00010001\ns_mov_b32 s5, 0x00010001")

    g.c("wave 7: write the 'not yet written' marker into this workgroup's hand-off slots, then count in")
    g(f"s_cmp_lg_u32 {sW}, 7\ns_cbranch_scc1 L_noclear")
    t = vT
    g(f"v_mov_b32 v{t}, -1\nv_mov_b32 v{t+1}, -1\nv_mov_b32 v{t+2}, -1\nv_mov_b32 v{t+3}, -1")
    g(f"v_lshlrev_b32 v{t+4}, 4, v{vLANE}")
    g(f"buffer_store_dwordx4 {r4(t)}, v{t+4}, {sWS}, {sYO} offen sc1")
    g(f"buffer_store_dwordx4 {r4(t)}, v{t+4}, {sWS}, {sYO} offen offset:1024 sc1")
    g("s_mov_b32 exec_lo, -1\ns_mov_b32 exec_hi, 0")
    g(f"buffer_store_dwordx4 {r4(t)}, v{t+4}, {sWS}, {sYO} offen offset:2048 sc1")
    g(f"s_mov_b64 exec, 1")
    g(f"buffer_store_dwordx2 {r2(t)}, off, {sWS}, {sMLO} sc1")
    g(f"s_mov_b64 exec, -1")
    g(f"v_lshrrev_b32 v{t+5}, 5, v{vLANE}\nv_mul_u32_u24 v{t+5}, {27*4096}, v{t+5}\nv_and_b32 v{t+6}, 31, v{vLANE}\nv_lshl_add_u32 v{t+5}, v{t+6}, 4, v{t+5}")
    g(f"s_cmp_eq_u32 {sUNIT}, 0\ns_cbranch_scc1 L_noclear_gu")
    g(f"s_add_u32 {sT0}, {sGUP}, {2*27*4096}")
    g(f"buffer_store_dwordx4 {r4(t)}, v{t+5}, {sWS}, {sGUP} offen sc1")
    g(f"buffer_store_dwordx4 {r4(t)}, v{t+5}, {sWS}, {sT0} offen sc1")
    g("L_noclear_gu:")
    g("s_waitcnt vmcnt(0)")
    g(f"v_mov_b32 v{t+7}, 1\ns_mov_b64 exec, 1")
    g(f"buffer_atomic_add v{t+7}, off, {sDBG}, 0 sc1")
    g("s_mov_b64 exec, -1")
    g("L_noclear:")
    stamp("clear_done")

    g(f"v_lshlrev_b32 v{vT}, 3, v0\nv_mov_b32 v{vT+2}, 0\nv_mov_b32 v{vT+3}, 0")
    g(f"ds_write_b64 v{vT}, {r2(vT+2)} offset:{L_ZERO}")

    kv_issued = [0]
    def tile_base(T): return RING + 16 * (T % 6)
    def issue_kv_load():
        n = kv_issued[0]
        if n >= 128: return
        T, r = n // 4, n % 4
        t = T % 16
        srd = sK if T < 16 else sV
        if r == 0:
            g(f"s_add_u32 s84, {sKVB}, {t*32768}")
        g.vm(("kv", n), f"buffer_load_dwordx4 {r4(tile_base(T)+4*r)}, v{vOKV}, {srd}, s84 offen offset:{r*256} {nt}")
        kv_issued[0] += 1
    wq_issued = [0]
    def issue_wq():
        n = wq_issued[0]
        if n >= 20: return
        g(f"s_add_u32 {sT0}, {sWQB}, {n*32768}")
        g.vm(("wq", n), f"buffer_load_dwordx4 {r4(vWQR+4*(n%6))}, v{vOWQ}, {sWQ}, {sT0} offen {nt}")
        wq_issued[0] += 1

    g(f"s_cmp_ge_u32 {sW}, 4\ns_cbranch_scc1 L_nox")
    vXR = vXQ
    g(f"v_lshlrev_b32 v{vT}, 2, v{vLANE}\ns_mul_i32 {sT0}, {sW}, 1280")
    for j in range(5):
        g(f"buffer_load_dword v{vXR+j}, v{vT}, {sX}, {sT0} offen offset:{j*256} {nt}")
    g("L_nox:")
    issue_wq(); issue_kv_load(); issue_wq(); issue_kv_load()
    g(f"s_cmp_ge_u32 {sW}, 4\ns_cbranch_scc1 L_noln")
    g("s_waitcnt vmcnt(4)")
    stamp("x_arrived")
    xf = vXF
    for j in range(5):
        g(f"v_lshlrev_b32 v{xf+2*j}, 16, v{vXR+j}\nv_and_b32 v{xf+2*j+1}, 0xffff0000, v{vXR+j}")
    a = vT; b_ = vT + 1; tm = vT + 2
    g(f"v_add_f32 v{a}, v{xf}, v{xf+1}")
    for j in range(2, 10): g(f"v_add_f32 v{a}, v{a}, v{xf+j}")
    allreduce64("v_add_f32", a, tm)
    g(f"v_mul_f32 v{a}, 0x3acccccd, v{a}")
    d = xf + 10
    for j in range(10): g(f"v_sub_f32 v{d+j}, v{xf+j}, v{a}")
    g(f"v_mul_f32 v{b_}, v{d}, v{d}")
    for j in range(1, 10): g(f"v_fmac_f32 v{b_}, v{d+j}, v{d+j}")
    allreduce64("v_add_f32", b_, tm)
    g(f"v_mul_f32 v{b_}, 0x3acccccd, v{b_}")
    bf16r(a, a)
    bf16r(b_, b_)
    g(f"v_add_f32 v{b_}, 0x3727c5ac, v{b_}")
    bf16r(b_, b_)
    g(f"v_sqrt_f32 v{b_}, v{b_}"); g.nop(1)
    bf16r(b_, b_)
    g(f"v_rcp_f32 v{b_}, v{b_}"); g.nop(1)
    for j in range(10):
        g(f"v_sub_f32 v{d+j}, v{xf+j}, v{a}")
    for j in range(10):
        bf16r(d + j, d + j)
    for j in range(10):
        g(f"v_mul_f32 v{d+j}, v{d+j}, v{b_}")
    for j in range(10):
        g(f"v_cvt_pk_bf16_f32 v{d+j}, v{d+j}, v{d+j}")
    g(f"s_mul_i32 {sT0}, {sW}, 2560\nv_lshlrev_b32 v{tm}, 3, v{vLANE}\nv_add_u32 v{tm}, {sT0}, v{tm}")
    for j in range(5):
        g(f"ds_write_b64 v{tm}, {r2(d+2*j)} offset:{L_XN + j*512}")
    g("L_noln:")
    g(f"s_add_u32 {sT0}, {sFFB}, 0")
    g.vm("f0", f"buffer_load_dwordx4 {r4(vFF)}, v{vOFA}, {sWG}, {sFFB} offen {nt}")
    g.vm("f1", f"buffer_load_dwordx4 {r4(vFF+4)}, v{vOFB}, {sWG}, {sFFB} offen {nt}")
    g.vm("f2", f"buffer_load_dwordx4 {r4(vFF+8)}, v{vOFA}, {sWU}, {sFFB} offen {nt}")
    g.vm("f3", f"buffer_load_dwordx4 {r4(vFF+12)}, v{vOFB}, {sWU}, {sFFB} offen {nt}")
    while wq_issued[0] < P["wq_ahead"]:
        issue_wq(); issue_kv_load()
    g("s_waitcnt lgkmcnt(0)\ns_barrier")
    stamp("ln_done")

    g(f"s_mul_i32 {sT0}, {sB}, 640\ns_mul_i32 {sT1}, {sW}, 80\ns_add_u32 {sT0}, {sT0}, {sT1}\ns_lshl_b32 {sT0}, {sT0}, 2")
    g(f"v_lshl_add_u32 v{vT}, v{vG}, 2, {sT0}")
    for t_ in range(20):
        g(f"ds_read_b32 v{vXQ+t_}, v{vT} offset:{L_XN + t_*16}")
    g(f"s_mul_i32 {sT0}, {sRB}, 80\ns_mul_i32 {sT1}, {sW}, 10\ns_add_u32 {sT0}, {sT0}, {sT1}\ns_lshl_b32 {sT0}, {sT0}, 2")
    g(f"v_lshrrev_b32 v{vT+1}, 3, v{vLANE}\nv_lshl_add_u32 v{vT+1}, v{vT+1}, 2, {sT0}")
    for be in range(4):
        for part in range(2):
            g(f"ds_read_b32 v{vXF+2*be+part}, v{vT+1} offset:{L_XN + be*2560 + part*32}")
    g("s_waitcnt lgkmcnt(0)")
    k_target = P["hold_tiles"] * 4
    for t_ in range(20):
        ab = vA + 4 * (t_ % 4)
        for w4 in range(4):
            g(f"v_and_b32 v{ab+w4}, v{vXQ+t_}, v{vM[w4]}")
        g.wait(("wq", t_))
        g.nop(2)
        cin = "0" if t_ == 0 else r4(vD)
        g(f"v_mfma_f32_16x16x32_bf16 {r4(vD)}, {r4(ab)}, {r4(vWQR+4*(t_%6))}, {cin}")
        issue_wq()
        if kv_issued[0] < k_target: issue_kv_load()
        if t_ == 7:
            g.wait("f3")
            for be in range(4):
                for part in range(2):
                    ab2 = vA + 4 * ((2 * be + part) % 4)
                    for w4 in range(4):
                        g(f"v_and_b32 v{ab2+w4}, v{vXF+2*be+part}, v{vM[w4]}")
                    g.nop(2)
                    for mat in range(2):
                        dd = vDF + (be * 2 + mat) * 4
                        cin = "0" if part == 0 else r4(dd)
                        g(f"v_mfma_f32_16x16x32_bf16 {r4(dd)}, {r4(ab2)}, {r4(vFF+mat*8+part*4)}, {cin}")
    while kv_issued[0] < k_target: issue_kv_load()
    stamp("q_mfma_done")
    g(f"v_and_b32 v{vT}, 7, v{vLANE}\nv_lshlrev_b32 v{vT}, 5, v{vT}")
    g(f"v_and_b32 v{vT+1}, 1, v{vG}\nv_lshl_add_u32 v{vT}, v{vT+1}, 4, v{vT}")
    g(f"v_lshrrev_b32 v{vT+1}, 1, v{vG}\nv_lshl_add_u32 v{vT}, v{vT+1}, 11, v{vT}")
    g(f"s_lshl_b32 {sT0}, {sW}, 12\nv_add_u32 v{vT}, {sT0}, v{vT}")
    g.nop(8)
    g("s_mov_b32 exec_lo, 0x00ff00ff\ns_mov_b32 exec_hi, 0xff00ff00")
    for be in range(4):
        for mat in range(2):
            g(f"ds_write_b128 v{vT}, {r4(vDF+(be*2+mat)*4)} offset:{L_FP + (be*128+mat*64)*4}")
    g("s_mov_b32 exec_lo, -1\ns_mov_b32 exec_hi, 0")
    g(f"s_lshl_b32 {sT0}, {sW}, 9")
    g(f"v_lshlrev_b32 v{vT+1}, 5, v{vC}\nv_lshl_add_u32 v{vT+1}, v{vG}, 4, v{vT+1}\nv_add_u32 v{vT+1}, {sT0}, v{vT+1}")
    g(f"ds_write_b128 v{vT+1}, {r4(vD)} offset:{L_QP}")
    g("s_mov_b64 exec, -1")
    g("s_waitcnt lgkmcnt(0)\ns_barrier")
    g(f"v_lshlrev_b32 v{vT}, 3, v{vLANE}")
    for w_ in range(8):
        g(f"ds_read_b64 {r2(vA+2*w_)}, v{vT} offset:{L_QP + w_*512}")
    g(f"s_lshl_b32 {sT0}, {sW}, 8\ns_add_u32 {sT0}, {sT0}, {L_FP}\nv_lshl_add_u32 v{vT+2}, v{vLANE}, 2, {sT0}")
    fr = vXQ
    for i in range(16):
        g(f"ds_read_b32 v{fr+i}, v{vT+2} offset:{i*2048}")
    g("s_waitcnt lgkmcnt(0)")
    for k in (4, 2, 1):
        for i in range(k):
            g(f"v_pk_add_f32 {r2(vA+2*i)}, {r2(vA+2*i)}, {r2(vA+2*(i+k))}")
    g(f"v_cvt_pk_bf16_f32 v{vA}, v{vA}, v{vA+1}")
    g(f"s_lshl_b32 {sT0}, {sW}, 8\nv_lshl_add_u32 v{vT}, v{vLANE}, 2, {sT0}")
    g(f"ds_write_b32 v{vT}, v{vA} offset:{L_QS}")
    g(f"v_lshl_add_u32 v{vT+1}, v{vC}, 4, {sT0}")
    g("s_waitcnt lgkmcnt(0)")
    g(f"ds_read_b128 {r4(vQ[0])}, v{vT+1} offset:{L_QS}")
    for k in (4, 2, 1):
        for i in range(k):
            g(f"v_pk_add_f32 {r2(fr+2*i)}, {r2(fr+2*i)}, {r2(fr+2*(i+k))}")
    g(f"v_add_f32 v{fr}, v{fr}, v{fr+1}")
    g(f"s_cmp_eq_u32 {sUNIT}, 0\ns_cbranch_scc1 L_nopub")
    g(f"s_lshr_b32 {sT0}, {sW}, 1\ns_mul_i32 {sT0}, {sT0}, {27*4096}\ns_and_b32 {sT1}, {sW}, 1\ns_lshl_b32 {sT1}, {sT1}, 8")
    g(f"s_add_u32 {sT0}, {sT0}, {sT1}\ns_add_u32 {sT0}, {sT0}, {sGUP}")
    g(f"v_lshlrev_b32 v{vT+2}, 2, v{vLANE}")
    g(f"buffer_store_dword v{fr}, v{vT+2}, {sWS}, {sT0} offen sc1")
    g("L_nopub:")
    g("s_waitcnt lgkmcnt(0)")
    stamp("q_ready")
    if P["dump"]:
        pass

    T_ = [vT, vT + 1, vT + 2, vT + 3]
    for t_ in range(16):
        rb = tile_base(t_)
        g.wait(("kv", 4 * t_ + 3))
        for j in range(4):
            for r in range(4):
                cin = "0" if j == 0 else f"v{T_[r]}"
                g(f"v_dot2_f32_bf16 v{T_[r]}, v{rb+4*r+j}, v{vQ[j]}, {cin}")
        while kv_issued[0] < min(128, 4 * (t_ + P["ahead"] + 1)): issue_kv_load()
        allreduce_row("v_add_f32", T_)
        g(f"s_lshl_b64 {sMASK}, {sMASK0}, {t_}")
        for r in range(4):
            g(f"v_cndmask_b32 v{vS[r]}, v{vS[r]}, v{T_[r]}, {sMASK}")
    stamp("k_done")
    vCNT = vT + 12; vMLP = vT + 10; vGU = vT + 13
    g.vm("cnt", f"buffer_load_dword v{vCNT}, off, {sDBG}, 0 sc1")
    for r in range(4): bf16r(vS[r], vS[r])
    for r in range(4): g(f"v_mul_f32 v{vS[r]}, {SCALE:#x}, v{vS[r]}")
    for r in range(4): bf16r(vS[r], vS[r])
    m = vT; l = vT + 1; tm = vT + 2
    g(f"v_max3_f32 v{m}, v{vS[0]}, v{vS[1]}, v{vS[2]}\nv_max_f32 v{m}, v{m}, v{vS[3]}")
    allreduce64("v_max_f32", m, tm)
    for r in range(4): g(f"v_sub_f32 v{vS[r]}, v{vS[r]}, v{m}")
    for r in range(4): g(f"v_mul_f32 v{vS[r]}, {LOG2E:#x}, v{vS[r]}")
    for r in range(4): g(f"v_exp_f32 v{vS[r]}, v{vS[r]}")
    g.nop(1)
    g(f"v_add_f32 v{l}, v{vS[0]}, v{vS[1]}\nv_add_f32 v{tm}, v{vS[2]}, v{vS[3]}\nv_add_f32 v{l}, v{l}, v{tm}")
    allreduce64("v_add_f32", l, tm)
    for r in range(4): g(f"v_cvt_pk_bf16_f32 v{vS[r]}, v{vS[r]}, v{vS[r]}")
    g(f"s_lshl_b32 {sT0}, {sW}, 3\nv_mov_b32 v{tm}, {sT0}\nv_mov_b32 v{tm+1}, 0\nv_mov_b32 v{tm+2}, 1")
    g("s_mov_b64 exec, 1")
    g(f"ds_write_b64 v{tm}, {r2(m)} offset:{L_ST}")
    g(f"ds_add_rtn_u32 v{tm+3}, v{tm+1}, v{tm+2} offset:{L_CNT}")
    g("s_mov_b64 exec, -1")
    g("s_waitcnt lgkmcnt(0)")
    g(f"v_readfirstlane_b32 {sT0}, v{tm+3}")
    g.nop(2)
    g(f"s_cmp_lg_u32 {sT0}, 7\ns_cbranch_scc1 L_nopubml")
    def wg_stats(st, M, Lr, e0, e1, tmp):
        g(f"v_max_f32 v{M}, v{st}, v{st+2}"); g.nop(2)
        allreduce_row("v_max_f32", [M], steps=(4, 8))
    a0 = vA
    g(f"v_lshrrev_b32 v{a0+8}, 2, v{vC}\nv_lshlrev_b32 v{a0+8}, 4, v{a0+8}")
    g(f"ds_read_b128 {r4(a0)}, v{a0+8} offset:{L_ST}")
    g("s_waitcnt lgkmcnt(0)")
    wg_stats(a0, a0 + 4, None, None, None, None)
    g(f"v_sub_f32 v{a0+5}, v{a0}, v{a0+4}\nv_sub_f32 v{a0+6}, v{a0+2}, v{a0+4}")
    g(f"v_mul_f32 v{a0+5}, {LOG2E:#x}, v{a0+5}\nv_mul_f32 v{a0+6}, {LOG2E:#x}, v{a0+6}")
    g(f"v_exp_f32 v{a0+5}, v{a0+5}\nv_exp_f32 v{a0+6}, v{a0+6}"); g.nop(1)
    g(f"v_mul_f32 v{a0+5}, v{a0+5}, v{a0+1}\nv_fmac_f32 v{a0+5}, v{a0+6}, v{a0+3}"); g.nop(2)
    allreduce_row("v_add_f32", [a0 + 5], steps=(4, 8))
    g("s_mov_b64 exec, 1")
    g(f"buffer_store_dwordx2 {r2(a0+4)}, off, {sWS}, {sMLO} sc1")
    g("s_mov_b64 exec, -1")
    g("L_nopubml:")
    stamp("softmax_done")

    wo_issued = [0]
    def issue_wo():
        n = wo_issued[0]
        if n >= 25: return
        if n < 20:
            rg, ct = n // 5, n % 5
            if ct == 0: g(f"s_add_u32 {sT2}, {sWOB}, {rg*1280}")
            g.vm(("wo", n), f"buffer_load_dwordx4 {r4(WOA+4*n)}, v{vOWO}, {sWO}, {sT2} offen offset:{ct*256} {nt}")
        else:
            ct = n - 20
            g.vm(("wo", n), f"buffer_load_dwordx4 {r4(WOA+4*n)}, v{vOWD}, {sWD}, {sWDB} offen offset:{ct*256} {nt}")
        wo_issued[0] += 1
    def spin_check(name, cond_code, reload_code):
        lo, lk = g.label(name + "_spin"), g.label(name + "_ok")
        g(cond_code)
        g(f"s_cbranch_scc1 {lk}")
        g(f"s_mov_b32 {sSPIN}, {P['spin_max']}")
        g(f"{lo}:")
        g("s_sleep 8")
        g(reload_code)
        g("s_waitcnt vmcnt(0)")
        g(f"s_sub_u32 {sSPIN}, {sSPIN}, 1\ns_cmp_eq_u32 {sSPIN}, 0\ns_cbranch_scc1 {lk}")
        g(cond_code)
        g(f"s_cbranch_scc0 {lo}")
        g(f"{lk}:")
    for tv in range(16):
        T = 16 + tv
        rb = tile_base(T)
        for r in range(4):
            for w4 in range(4):
                g(f"v_and_b32_dpp v{vA+4*r+w4}, v{vS[r]}, v{vM[w4]} row_newbcast:{tv} row_mask:0xf bank_mask:0xf")
        g.wait(("kv", 4 * T + 3))
        for r in range(4):
            cin = "0" if (tv == 0 and r == 0) else r4(vD)
            g(f"v_mfma_f32_16x16x32_bf16 {r4(vD)}, {r4(vA+4*r)}, {r4(rb+4*r)}, {cin}")
        while kv_issued[0] < min(128, 4 * (T + P["ahead"] + 1)): issue_kv_load()
        if tv >= 1:
            issue_wo(); issue_wo()
        if tv == 1:
            g.wait("cnt")
            cond = f"v_readfirstlane_b32 {sT0}, v{vCNT}\ns_nop 2\ns_cmp_ge_u32 {sT0}, 256"
            g.nop(1)
            spin_check("cnt", cond, f"buffer_load_dword v{vCNT}, off, {sDBG}, 0 sc1")
            g(f"v_and_b32 v{vT}, 7, v{vC}\nv_lshlrev_b32 v{vT}, 9, v{vT}\nv_lshrrev_b32 v{vT+1}, 3, v{vC}")
            g(f"v_lshl_add_u32 v{vT}, v{vT+1}, 8, v{vT}\nv_lshl_add_u32 v{vT+4}, v{vG}, 2, v{vT}")
            g.vm("gu", f"buffer_load_dword v{vGU}, v{vT+4}, {sWS}, {sGUC} offen sc1")
        if tv == 4:
            g.wait("gu")
            cond = f"v_cmp_eq_u32 vcc, -1, v{vGU}\ns_nop 4\ns_cmp_eq_u64 vcc, 0"
            spin_check("gu", cond, f"buffer_load_dword v{vGU}, v{vT+4}, {sWS}, {sGUC} offen sc1")
            x0 = vT; x1 = vT + 1; x2 = vT + 2; x3 = vT + 3
            g.nop(2)
            g(f"v_add_f32_dpp v{vGU}, v{vGU}, v{vGU} quad_perm:[1,0,3,2] row_mask:0xf bank_mask:0xf"); g.nop(2)
            g(f"v_add_f32_dpp v{vGU}, v{vGU}, v{vGU} quad_perm:[2,3,0,1] row_mask:0xf bank_mask:0xf"); g.nop(2)
            g(f"v_add_f32_dpp v{vGU}, v{vGU}, v{vGU} row_half_mirror row_mask:0xf bank_mask:0xf"); g.nop(2)
            g(f"v_mov_b32_dpp v{x0}, v{vGU} row_ror:8 row_mask:0xf bank_mask:0xf")
            g(f"v_cmp_gt_u32 vcc, 8, v{vC}"); g.nop(2)
            g(f"v_cndmask_b32 v{x1}, v{x0}, v{vGU}, vcc")
            g(f"v_cndmask_b32 v{x2}, v{vGU}, v{x0}, vcc")
            bf16r(x1, x1); bf16r(x2, x2)
            g(f"v_mul_f32 v{x0}, v{x1}, v{x1}\nv_mul_f32 v{x0}, v{x0}, v{x1}")
            g(f"v_mul_f32 v{x0}, 0x3d372713, v{x0}\nv_add_f32 v{x0}, v{x0}, v{x1}")
            g(f"v_mul_f32 v{x0}, 0x40135761, v{x0}")
            g(f"v_exp_f32 v{x0}, v{x0}"); g.nop(1)
            g(f"v_add_f32 v{x0}, 1.0, v{x0}\nv_rcp_f32 v{x0}, v{x0}"); g.nop(1)
            g(f"v_sub_f32 v{x0}, 1.0, v{x0}\nv_mul_f32 v{x0}, v{x0}, v{x1}")
            bf16r(x0, x0)
            g(f"v_mul_f32 v{x0}, v{x0}, v{x2}")
            g(f"v_cvt_pk_bf16_f32 v{vGU}, v{x0}, v{x0}")
        if tv == 10:
            g.vm("ml", f"buffer_load_dwordx2 {r2(vMLP)}, off, {sWS}, {sMLP} sc1")
    while wo_issued[0] < 25: issue_wo()
    stamp("v_done")
    g.wait("ml")
    cond = f"v_cmp_eq_u32 vcc, -1, v{vMLP}\nv_cmp_eq_u32 s[6:7], -1, v{vMLP+1}\ns_nop 4\ns_or_b64 vcc, vcc, s[6:7]\ns_cmp_eq_u64 vcc, 0"
    spin_check("ml", cond, f"buffer_load_dwordx2 {r2(vMLP)}, off, {sWS}, {sMLP} sc1")

    g.nop(8)
    g("s_mov_b32 exec_lo, -1\ns_mov_b32 exec_hi, 0")
    g(f"s_lshl_b32 {sT0}, {sW}, 9")
    g(f"v_lshlrev_b32 v{vT+1}, 5, v{vC}\nv_lshl_add_u32 v{vT+1}, v{vG}, 4, v{vT+1}\nv_add_u32 v{vT+1}, {sT0}, v{vT+1}")
    g(f"ds_write_b128 v{vT+1}, {r4(vD)} offset:{L_OP}")
    g("s_mov_b64 exec, -1")
    a0 = vA
    g(f"v_lshrrev_b32 v{a0+8}, 2, v{vC}\nv_lshlrev_b32 v{a0+9}, 4, v{a0+8}")
    g(f"v_and_b32 v{a0+10}, 3, v{vC}\nv_lshl_add_u32 v{a0+10}, v{vG}, 2, v{a0+10}\nv_lshlrev_b32 v{a0+10}, 2, v{a0+10}")
    g(f"v_lshl_add_u32 v{a0+10}, v{a0+8}, 10, v{a0+10}\ns_lshl_b32 {sT0}, {sW}, 6\nv_add_u32 v{a0+10}, {sT0}, v{a0+10}")
    g("s_waitcnt lgkmcnt(0)\ns_barrier")
    stamp("bar3")
    g(f"ds_read_b128 {r4(a0)}, v{a0+9} offset:{L_ST}")
    g(f"ds_read_b32 v{a0+11}, v{a0+10} offset:{L_OP}\nds_read_b32 v{a0+12}, v{a0+10} offset:{L_OP+512}")
    g("s_waitcnt lgkmcnt(0)")
    M = a0 + 4
    g(f"v_max_f32 v{M}, v{a0}, v{a0+2}"); g.nop(2)
    allreduce_row("v_max_f32", [M], steps=(4, 8))
    g(f"v_max_f32 v{M}, v{M}, v{vMLP}")
    g(f"v_sub_f32 v{a0+5}, v{a0}, v{M}\nv_sub_f32 v{a0+6}, v{a0+2}, v{M}\nv_sub_f32 v{a0+7}, v{vMLP}, v{M}")
    for i in (5, 6, 7): g(f"v_mul_f32 v{a0+i}, {LOG2E:#x}, v{a0+i}")
    for i in (5, 6, 7): g(f"v_exp_f32 v{a0+i}, v{a0+i}")
    g.nop(1)
    Lr = a0 + 13; O = a0 + 14
    g(f"v_mul_f32 v{Lr}, v{a0+5}, v{a0+1}\nv_mul_f32 v{O}, v{a0+5}, v{a0+11}")
    g(f"v_fmac_f32 v{Lr}, v{a0+6}, v{a0+3}\nv_fmac_f32 v{O}, v{a0+6}, v{a0+12}")
    g.nop(1)
    for st in (4, 8):
        g(f"v_add_f32_dpp v{Lr}, v{Lr}, v{Lr} row_ror:{st} row_mask:0xf bank_mask:0xf")
        g(f"v_add_f32_dpp v{O}, v{O}, v{O} row_ror:{st} row_mask:0xf bank_mask:0xf")
        g.nop(1)
    g(f"v_fmac_f32 v{Lr}, v{a0+7}, v{vMLP+1}")
    g(f"v_rcp_f32 v{Lr}, v{Lr}"); g.nop(1)
    g(f"v_mul_f32 v{O}, v{O}, v{Lr}")
    g(f"v_cvt_pk_bf16_f32 v{vT}, v{O}, v{O}")
    g.nop(2)
    for rg in range(4):
        for w4 in range(4):
            g(f"v_and_b32_dpp v{vA+4*rg+w4}, v{vT}, v{vM[w4]} row_newbcast:{rg} row_mask:0xf bank_mask:0xf")
    for w4 in range(4):
        g(f"v_and_b32 v{vT+4+w4}, v{vGU}, v{vM[w4]}")
    g.wait(("wo", 24))
    vY = RING
    for rg in range(4):
        for ct in range(5):
            cin = "0" if rg == 0 else r4(vY + 4 * ct)
            g(f"v_mfma_f32_16x16x32_bf16 {r4(vY+4*ct)}, {r4(vA+4*rg)}, {r4(WOA+4*(rg*5+ct))}, {cin}")
    for ct in range(5):
        g(f"v_mfma_f32_16x16x32_bf16 {r4(vY+4*ct)}, {r4(vT+4)}, {r4(WOA+4*(20+ct))}, {r4(vY+4*ct)}")
    g(f"s_mul_i32 {sT0}, {sW}, 2560")
    g(f"v_lshlrev_b32 v{vT+1}, 5, v{vC}\nv_lshl_add_u32 v{vT+1}, v{vG}, 4, v{vT+1}\nv_add_u32 v{vT+1}, {sT0}, v{vT+1}")
    g.nop(8)
    g("s_mov_b32 exec_lo, -1\ns_mov_b32 exec_hi, 0")
    for ct in range(5):
        g(f"ds_write_b128 v{vT+1}, {r4(vY+4*ct)} offset:{L_YP + ct*512}")
    g("s_mov_b64 exec, -1")
    g("s_waitcnt lgkmcnt(0)\ns_barrier")
    stamp("bar4")
    g(f"s_cmp_ge_u32 {sW}, 3\ns_cbranch_scc1 L_cons")
    g(f"v_cmp_gt_u32 vcc, 160, v0\ns_and_saveexec_b64 {sEXEC}, vcc\ns_cbranch_execz L_fin")
    g(f"v_lshlrev_b32 v{vT}, 4, v0")
    yb = RING + 32
    for w_ in range(8):
        g(f"ds_read_b128 {r4(yb+4*w_)}, v{vT} offset:{L_YP + w_*2560}")
    g("s_waitcnt lgkmcnt(0)")
    for k in (4, 2, 1):
        for i in range(k):
            g(f"v_pk_add_f32 {r2(yb+4*i)}, {r2(yb+4*i)}, {r2(yb+4*(i+k))}")
            g(f"v_pk_add_f32 {r2(yb+4*i+2)}, {r2(yb+4*i+2)}, {r2(yb+4*(i+k)+2)}")
    g(f"buffer_store_dwordx4 {r4(yb)}, v{vT}, {sWS}, {sYO} offen sc1")
    g("s_branch L_fin")
    g("L_cons:")
    g(f"s_cmp_lg_u32 {sW}, 3\ns_cbranch_scc1 L_fin\ns_cmp_ge_u32 {sSLOT}, 40\ns_cbranch_scc1 L_fin")
    cb = RING + 32
    g(f"v_lshrrev_b32 v{vT}, 2, v{vLANE}\nv_mul_u32_u24 v{vT}, 2560, v{vT}\nv_and_b32 v{vT+1}, 3, v{vLANE}\nv_lshl_add_u32 v{vT}, v{vT+1}, 4, v{vT}")
    g(f"s_mul_i32 {sT0}, {sB}, {64*2560}\ns_lshl_b32 {sT1}, {sSLOT}, 6\ns_add_u32 {sT0}, {sT0}, {sT1}")
    g(f"s_mul_i32 {sT1}, {sB}, 1280\ns_lshl_b32 {sT2}, {sSLOT}, 5\ns_add_u32 {sT1}, {sT1}, {sT2}")
    g(f"v_lshlrev_b32 v{vT+2}, 3, v{vT+1}")
    g(f"buffer_load_dwordx2 {r2(vT+4)}, v{vT+2}, {sX}, {sT1} offen")
    g(f"s_mov_b32 {sSPIN}, {P['spin_max']}")
    g("L_poll:")
    for jj in range(4):
        g(f"s_add_u32 {sT2}, {sT0}, {jj*16*2560}")
        g(f"buffer_load_dwordx4 {r4(cb+4*jj)}, v{vT}, {sWS}, {sT2} offen sc1")
    g("s_waitcnt vmcnt(0)")
    mx = vT + 6
    g(f"v_max3_u32 v{mx}, v{cb}, v{cb+1}, v{cb+2}")
    for i in range(3, 15, 2):
        g(f"v_max3_u32 v{mx}, v{mx}, v{cb+i}, v{cb+i+1}")
    g(f"v_max_u32 v{mx}, v{mx}, v{cb+15}")
    g(f"v_cmp_eq_u32 vcc, -1, v{mx}")
    g("s_nop 4\ns_cmp_eq_u64 vcc, 0\ns_cbranch_scc1 L_polled")
    g(f"s_sub_u32 {sSPIN}, {sSPIN}, 1\ns_cmp_eq_u32 {sSPIN}, 0\ns_cbranch_scc1 L_polled")
    g("s_sleep 4\ns_branch L_poll")
    g("L_polled:")
    for k in (2, 1):
        for i in range(k):
            g(f"v_pk_add_f32 {r2(cb+4*i)}, {r2(cb+4*i)}, {r2(cb+4*(i+k))}")
            g(f"v_pk_add_f32 {r2(cb+4*i+2)}, {r2(cb+4*i+2)}, {r2(cb+4*(i+k)+2)}")
    g.nop(2)
    allreduce_row("v_add_f32", [cb, cb + 1, cb + 2, cb + 3], steps=(4, 8))
    for i in range(4):
        allreduce_cross("v_add_f32", cb + i, vT + 6)
    g(f"v_lshlrev_b32 v{vT+6}, 16, v{vT+4}\nv_and_b32 v{vT+7}, 0xffff0000, v{vT+4}\nv_lshlrev_b32 v{vT+8}, 16, v{vT+5}\nv_and_b32 v{vT+9}, 0xffff0000, v{vT+5}")
    for i in range(4): g(f"v_add_f32 v{cb+i}, v{cb+i}, v{vT+6+i}")
    g(f"v_cvt_pk_bf16_f32 v{cb}, v{cb}, v{cb+1}\nv_cvt_pk_bf16_f32 v{cb+1}, v{cb+2}, v{cb+3}")
    g("s_mov_b64 exec, 0xf")
    g(f"buffer_store_dwordx2 {r2(cb)}, v{vT+2}, {sOUT}, {sT1} offen")
    g("L_fin:")
    if P["stamp"]:
        g("s_mov_b64 exec, -1")
        stamp("end")
        g(f"s_getreg_b32 s92, hwreg(HW_REG_XCC_ID)\nv_writelane_b32 v252, s92, 31")
        g(f"s_lshl_b32 {sT0}, s2, 3\ns_add_u32 {sT0}, {sT0}, {sW}\ns_lshl_b32 {sT0}, {sT0}, 7\ns_add_u32 {sT0}, {sT0}, {WS_STAMP}")
        g(f"v_lshlrev_b32 v{vT}, 2, v{vLANE}\ns_mov_b32 exec_lo, -1\ns_mov_b32 exec_hi, 0")
        g(f"buffer_store_dword v252, v{vT}, {sWS}, {sT0} offen")
    g("L_end:\ns_endpgm")

    nv = 256 if P["stamp"] else NVGPR
    tail = ['.section .rodata,"a"', ".p2align 6", f".amdhsa_kernel {KN}_kernel",
            f"  .amdhsa_next_free_vgpr {nv}", "  .amdhsa_next_free_sgpr 96", f"  .amdhsa_accum_offset {(nv+3)//4*4}",
            "  .amdhsa_group_segment_fixed_size 0", "  .amdhsa_kernarg_size 96", "  .amdhsa_user_sgpr_count 2",
            "  .amdhsa_user_sgpr_kernarg_segment_ptr 1", "  .amdhsa_system_sgpr_workgroup_id_x 1",
            "  .amdhsa_float_denorm_mode_32 3", "  .amdhsa_float_denorm_mode_16_64 3",
            ".end_amdhsa_kernel"]
    return "\n".join(hdr + g.L + tail) + "\n", STAMPS

if __name__ == "__main__":
    kw = {}
    out = "cdna_kernels/" + KN + ".s"
    for a in sys.argv[1:]:
        k, v = a.split("=")
        if k == "out": out = v
        else: kw[k] = int(v) if v.lstrip("-").isdigit() else v
    s, st = gen(**kw)
    open(out, "w").write(s)
    print("wrote", out, len(s), "bytes; stamps:", st)
```

```python
import sys

KN = "parallel_sum__gqa_block_cached__geglu_ffn__decode"

class G:
    def __init__(self):
        self.L = []
        self.q = []
        self.total = 0
        self.uid = 0
    def __call__(self, s):
        for ln in s.split("\n"):
            t = ln.strip()
            self.L.append(t if t.endswith(":") else "  " + t)
    def c(self, s): self.L.append("  ; " + s)
    def vm(self, tag, s):
        self(s); self.q.append(tag); self.total += 1
    def wait(self, tag):
        if tag not in self.q: return False
        idx = len(self.q) - 1 - self.q[::-1].index(tag)
        n = len(self.q) - idx - 1
        assert n <= 63, n
        self(f"s_waitcnt vmcnt({n})")
        self.q = self.q[idx + 1:]
        return True
    def label(self, base):
        self.uid += 1
        return f"L_{base}_{self.uid}"
    def nop(self, n):
        while n > 0:
            k = min(n, 16); self(f"s_nop {k-1}"); n -= k

DEFAULTS = dict(
    ld_nt="nt",
    hold=32,
    win=6,
    wq_ahead=3,
    pre_pairs=2,
    hold2=0,
    hold3=0,
    wq_pat=0,
    wq_pf=0,
    pf_fl='nt',
    ffx=(6, 7, 0), dsx=(0, 1, 2),
    relief=0,
    bad_kpat=None, bad_wq_extra=2,
    prio_off=99,
    prio=0,
    tabD2=None,
    wo_plan=None,
    tabH=None, tabF=None, tabD=None,
    hmap=0, badx=(0, 6),
    hsplit=0,
    hx=0,
    xmap=0,
    w_nt=None,
    out_fl='',
    trot=0,
    rot_ax=0, rot_aj=1, rot_sh=0,
    dual=0, late_mask=0xB0, win_s=4, win_l=10,
    win_k=0,
    roll_k=0,
    roll=0,
    wo_start=1, wo_per=2,
    wok_start=99, wok_per=0,
    rot=0,
    kq_num=1, kq_den=1,
    ffn_t=7,
    ml_tv=4,
    warm=1,
    stamp=0,
    spin_max=40000,
    poll_sleep=4, poll2=1, poll_gap=6,
    nwo=25,
    vstamp=0, tstamp=0,
    x_noml=0, x_nogu=0,
)

WS_Y = 0
WS_ML = 0x140000
WS_GU = 0x150000
WS_QX = 0x230000
WS_STAMP = 0x340000
STAMP_DW = 64
WS_SIZE = 0x400000
L_XN = 0
L_ZERO = 10240
L_ST = 12352
L_CNT = 12416
L_NON = 12432
L_QP = 14336
L_QS = 18432
L_YP = 20480
L_OP = 40960
L_FP = 20480
LDS_BYTES = L_FP + 32768

sX, sK, sV, sWQ, sWO, sWG, sWU, sWD, sOUT, sDBG, sWS = [f"s[{28+4*i}:{31+4*i}]" for i in range(11)]
sW, sH, sB, sHALF, sSLOT, sKVB, sWQB, sWOB, sWDB, sFFB = [f"s{72+i}" for i in range(10)]
sT0, sT1, sKVT, sT2 = "s82", "s83", "s84", "s85"
sMASK0, sMASK, sEXEC = "s[4:5]", "s[6:7]", "s[8:9]"
sGUC, sMLP, sMLO, sYO, sGUP, sUNIT, sSPIN, sRB, sQXP, sQXC, sJ7, sXR = [f"s{10+i}" for i in range(12)]
sDS2, sWDB2, sGUC2 = "s22", "s18", "s19"
WD2 = 120
sN0, sN1, sN = "s90", "s91", "s[90:91]"

vLANE, vC, vG = 1, 2, 3
vM = [4, 5, 6, 7]
vOKV, vOWQ, vOWO, vOWD, vOFA, vOFB = 8, 9, 10, 11, 12, 13
vQ = [14, 15, 16, 17]
vS = [18, 19, 20, 21]
vD = 22
vA = 26
vT = 42
vGA, vHID = 46, 47
vGR = 48
vMW, vCW = 52, 53
vX = 54
RING = 56
WOA = 152
vWQR = 152
vNP = 244
vFF = 176
vXQ = 192
vXF = 212
vDF = 220
NVGPR = 252

def r4(b): return f"v[{b}:{b+3}]"
def r2(b): return f"v[{b}:{b+1}]"
LOG2E = 0x3FB8AA3B
SCALE = 0x3DB504F3

def gen(**kw):
    P = dict(DEFAULTS); P.update(kw)
    nt = P["ld_nt"]
    wnt = nt if P["w_nt"] is None else P["w_nt"]
    g = G()
    hdr = ["; out = x + Attn(LN(x)) @ wo + GeGLU_FFN(LN(x))   B=4, D=640, H=32, Sk=4096, Dh=128, F=1728, bf16 in / bf16 out",
           "; One launch, 256 workgroups x 8 waves; workgroup = (batch, head, half of the keys).",
           ";  prologue: LayerNorm, q = xn @ wq[:, head] (MFMA, 'delta' A operand), FFN gate/up partial products of one",
           ";            (128-byte column block, 80-row block) unit; the first K tiles are prefetched meanwhile",
           ";  K phase : per wave 16 tiles of 16 keys, v_dot2 + DPP row sums, wave-local max / exp / sum",
           ";  V phase : P.V by MFMA; wo / w_down tiles are loaded into registers along the way",
           ";  tail    : combine the waves, normalise with the statistics of both halves, project with wo (+ w_down rows),",
           ";            publish the 640 partial outputs; 160 waves sum the 64 partials per batch and write out",
           "; Hand-offs between workgroups go through d_ws as 16-byte granules {value, value, tag}; the tag is a clock value",
           "; that workgroup 0 puts into d_debug[32:33] at the start of the launch, so stale words of earlier launches never match.",
           f"; @launch grid=(256,1,1) block=(512,1,1) lds={LDS_BYTES}",
           '.amdgcn_target "amdgcn-amd-amdhsa--gfx950"', ".text", f".globl {KN}_kernel", ".p2align 8",
           f".type {KN}_kernel,@function", f"{KN}_kernel:"]
    STAMPS = []
    def stamp(name):
        if P["stamp"]:
            g(f"s_memrealtime s[92:93]\ns_waitcnt lgkmcnt(0)\nv_writelane_b32 v252, s92, {len(STAMPS)}")
            STAMPS.append(name)

    DPP = "row_mask:0xf bank_mask:0xf"
    def allreduce_row(op, regs, steps=(8, 4, 2, 1)):
        for st in steps:
            for r in regs: g(f"{op}_dpp v{r}, v{r}, v{r} row_ror:{st} {DPP}")
            if len(regs) < 3: g.nop(3 - len(regs))
    def allreduce_cross(op, r, t):
        g(f"v_mov_b32 v{t}, v{r}"); g.nop(2)
        g(f"v_permlane16_swap_b32 v{r}, v{t}"); g.nop(1)
        g(f"{op} v{r}, v{r}, v{t}")
        g(f"v_mov_b32 v{t}, v{r}"); g.nop(2)
        g(f"v_permlane32_swap_b32 v{r}, v{t}"); g.nop(1)
        g(f"{op} v{r}, v{r}, v{t}")
    def allreduce64(op, r, t):
        g.nop(2); allreduce_row(op, [r]); allreduce_cross(op, r, t)
    def bf16r(dst, src):
        g(f"v_cvt_pk_bf16_f32 v{dst}, v{src}, v{src}\nv_and_b32 v{dst}, 0xffff0000, v{dst}")
    def spin_check(name, cond_code, reload_code):
        lo, lk = g.label(name + "_spin"), g.label(name + "_ok")
        g(cond_code)
        g(f"s_cbranch_scc1 {lk}\ns_mov_b32 {sSPIN}, {P['spin_max']}")
        g(f"{lo}:")
        g(f"s_sleep 2\n{reload_code}\ns_waitcnt vmcnt(0)")
        g(f"s_sub_u32 {sSPIN}, {sSPIN}, 1\ns_cmp_eq_u32 {sSPIN}, 0\ns_cbranch_scc1 {lk}")
        g(cond_code)
        g(f"s_cbranch_scc0 {lo}")
        g(f"{lk}:")
    def tag_cond(bases):
        t, u = vX, vX + 1
        code = []
        for i, b in enumerate(bases):
            code.append(f"v_xor_b32 v{t if i == 0 else u}, {sN0}, v{b+2}")
            if i: code.append(f"v_or_b32 v{t}, v{t}, v{u}")
            code.append(f"v_xor_b32 v{u}, {sN1}, v{b+3}\nv_or_b32 v{t}, v{t}, v{u}")
        code.append(f"v_cmp_ne_u32 vcc, 0, v{t}\ns_nop 4\ns_cmp_eq_u64 vcc, 0")
        return "\n".join(code)
    def lds_spin(name, addr_off, want_ge):
        lo, lk = g.label(name + "_spin"), g.label(name + "_ok")
        g(f"v_mov_b32 v{vX}, 0\ns_mov_b32 {sSPIN}, {P['spin_max']}")
        g(f"{lo}:")
        g(f"ds_read_b32 v{vX+1}, v{vX} offset:{addr_off}\ns_waitcnt lgkmcnt(0)")
        g(f"v_readfirstlane_b32 {sT0}, v{vX+1}\ns_nop 2\ns_cmp_ge_u32 {sT0}, {want_ge}\ns_cbranch_scc1 {lk}")
        g(f"s_sub_u32 {sSPIN}, {sSPIN}, 1\ns_cmp_eq_u32 {sSPIN}, 0\ns_cbranch_scc1 {lk}")
        g(f"s_sleep 2\ns_branch {lo}")
        g(f"{lk}:")

    def table_lookup(tab, dst, xreg, greg, tmp):
        lits = [sum(tab[x][gg] << (8 * gg) for gg in range(4)) for x in range(8)]
        g(f"s_mov_b32 {dst}, {lits[0]:#x}")
        for x in range(1, 8):
            g(f"s_cmp_eq_u32 {xreg}, {x}\ns_cselect_b32 {dst}, {lits[x]:#x}, {dst}")
        g(f"s_lshl_b32 {tmp}, {greg}, 3\ns_lshr_b32 {dst}, {dst}, {tmp}\ns_and_b32 {dst}, {dst}, 0xff")
    g("s_cmp_ge_u32 s2, 256\ns_cbranch_scc1 L_end")
    koff = {sX: 0, sK: 8, sV: 16, sWQ: 24, sWO: 32, sWG: 48, sWU: 56, sWD: 64, sOUT: 72, sDBG: 80, sWS: 88}
    size = {sX: 5120, sK: 0x8000000, sV: 0x8000000, sWQ: 5242880, sWO: 5242880, sWG: 2211840, sWU: 2211840,
            sWD: 2211840, sOUT: 5120, sDBG: 256, sWS: WS_SIZE}
    def sb(srd): return int(srd[2:srd.index(":")])
    for srd in (sX, sWQ, sK, sWG, sWU, sDBG, sWS, sV, sWO, sWD, sOUT):
        g(f"s_load_dwordx2 s[{sb(srd)}:{sb(srd)+1}], s[0:1], {koff[srd]}")
    if P["stamp"]:
        g("v_mov_b32 v252, 0\ns_memrealtime s[92:93]")
    g(f"s_memrealtime {sN}")
    def srd_consts(lst):
        for srd in lst: g(f"s_mov_b32 s{sb(srd)+2}, {size[srd]}\ns_mov_b32 s{sb(srd)+3}, 0x20000")
    srd_consts((sX, sWQ, sK))
    g(f"v_and_b32 v{vLANE}, 63, v0\nv_lshrrev_b32 v{vT}, 6, v0")
    g(f"v_and_b32 v{vC}, 15, v{vLANE}\nv_lshrrev_b32 v{vG}, 4, v{vLANE}")
    g(f"v_readfirstlane_b32 {sW}, v{vT}")
    g(f"s_and_b32 {sT0}, s2, 7\ns_lshr_b32 {sT1}, s2, 3")
    if P["xmap"] == 0:
        g(f"s_lshl_b32 {sH}, {sT0}, 2\ns_lshr_b32 {sT2}, {sT1}, 3\ns_xor_b32 {sT2}, {sT2}, {P['hx']}\ns_add_u32 {sH}, {sH}, {sT2}")
        g(f"s_and_b32 {sJ7}, {sT1}, 7\ns_and_b32 {sHALF}, {sJ7}, 1\ns_lshr_b32 {sB}, {sJ7}, 1")
        if P["tabH"]:
            assert sorted(h for r in P["tabH"] for h in r) == list(range(32))
            table_lookup(P["tabH"], sH, sT0, sT2, "s87")
        if P["hmap"]:
            b0, b1 = P["badx"]
            others = [xx for xx in range(8) if xx not in (b0, b1)]
            tab = sum((others.index(xx) if xx in others else 0) << (4 * xx) for xx in range(8))
            g(f"s_lshl_b32 {sH}, {sT0}, 2\ns_lshr_b32 {sH}, {tab:#x}, {sH}\ns_and_b32 {sH}, {sH}, 15\ns_lshl_b32 {sH}, {sH}, 2\ns_add_u32 {sH}, {sH}, {sT2}")
            g(f"s_mul_i32 s87, {sH}, 11\ns_lshr_b32 s87, s87, 5\ns_mul_i32 s88, s87, 3\ns_sub_u32 s88, {sH}, s88")
            g(f"s_add_u32 {sH}, s88, 1\ns_cmp_eq_u32 s88, 0\ns_cselect_b32 {sH}, 0, {sH}\ns_lshl_b32 s87, s87, 2\ns_add_u32 {sH}, {sH}, s87")
            g(f"s_lshl_b32 s87, {sT2}, 2\ns_add_u32 s87, s87, 1\ns_cmp_eq_u32 {sT0}, {b0}\ns_cselect_b32 {sH}, s87, {sH}")
            g(f"s_add_u32 s87, s87, 16\ns_cmp_eq_u32 {sT0}, {b1}\ns_cselect_b32 {sH}, s87, {sH}")
        if P["hsplit"]:
            g(f"s_lshr_b32 {sT2}, {sT1}, 2\ns_cmp_eq_u32 {sT2}, 3\ns_cselect_b32 {sT2}, 4, 0\ns_xor_b32 {sH}, {sH}, {sT2}")
    else:
        g(f"s_lshl_b32 {sT2}, {sT0}, 2\ns_lshr_b32 {sH}, 0x32230110, {sT2}\ns_and_b32 {sH}, {sH}, 3")
        g(f"s_lshr_b32 {sHALF}, 0x3c, {sT0}\ns_and_b32 {sHALF}, {sHALF}, 1")
        g(f"s_lshl_b32 {sH}, {sH}, 3\ns_lshr_b32 {sT2}, {sT1}, 2\ns_add_u32 {sH}, {sH}, {sT2}")
        g(f"s_and_b32 {sB}, {sT1}, 3\ns_lshl_b32 {sJ7}, {sB}, 1\ns_add_u32 {sJ7}, {sJ7}, {sHALF}")
    g(f"s_mul_i32 {sT0}, {sT0}, {P['rot_ax']}\ns_mul_i32 {sT1}, {sT1}, {P['rot_aj']}\ns_add_u32 s89, {sT0}, {sT1}\ns_lshr_b32 s89, s89, {P['rot_sh']}\ns_and_b32 s89, s89, 15")
    g(f"v_lshlrev_b32 v{vT}, 4, v{vC}")
    g(f"v_lshl_add_u32 v{vOKV}, v{vG}, 10, v{vT}")
    if P["wq_pat"] == 0: g(f"v_lshl_add_u32 v{vOWQ}, v{vG}, 13, v{vT}")
    else: g(f"v_mul_u32_u24 v{vOWQ}, {160*8192}, v{vG}\nv_add_u32 v{vOWQ}, v{vOWQ}, v{vT}")
    g(f"v_lshlrev_b32 v{vT+3}, 2, v{vLANE}\ns_mul_i32 s86, {sW}, 1280")
    g(f"s_lshl_b32 {sT0}, {sB}, 5\ns_add_u32 s87, {sT0}, {sH}")
    g(f"s_lshl_b32 {sKVB}, s87, 20\ns_lshl_b32 {sT1}, {sHALF}, 19\ns_add_u32 {sKVB}, {sKVB}, {sT1}")
    g(f"s_lshl_b32 {sT1}, {sW}, 12\ns_add_u32 {sKVB}, {sKVB}, {sT1}")
    g(f"s_mul_i32 {sWQB}, {sW}, {(80 if P['wq_pat'] == 0 else 20)*8192}\ns_lshl_b32 {sT1}, {sH}, 8\ns_add_u32 {sWQB}, {sWQB}, {sT1}")
    g(f"s_mul_i32 {sXR}, {sJ7}, 5\ns_lshr_b32 {sXR}, {sXR}, 1")
    g("s_waitcnt lgkmcnt(0)")
    if P["stamp"]:
        g("v_writelane_b32 v252, s92, 0"); STAMPS.append("start")
        stamp("args")
    if P["prio"] == 5:
        g(f"s_cmp_lt_u32 {sW}, 4\ns_cbranch_scc1 L_prio5\ns_setprio 1")
        g("L_prio5:")
    def setup_b():
        srd_consts((sV, sWO, sWG, sWU, sWD, sOUT, sDBG, sWS))
        g(f"s_lshl_b32 {sSLOT}, {sH}, 1\ns_add_u32 {sSLOT}, {sSLOT}, {sHALF}")
        g(f"v_lshlrev_b32 v{vT}, 4, v{vC}")
        g(f"v_mul_u32_u24 v{vOWO}, 5120, v{vG}\nv_add_u32 v{vOWO}, v{vOWO}, v{vT}")
        g(f"v_mul_u32_u24 v{vOWD}, 1280, v{vG}\nv_add_u32 v{vOWD}, v{vOWD}, v{vT}")
        g(f"v_lshrrev_b32 v{vT+1}, 3, v{vLANE}\nv_and_b32 v{vT+2}, 7, v{vLANE}\nv_lshlrev_b32 v{vT+2}, 4, v{vT+2}")
        g(f"v_mul_u32_u24 v{vOFA}, 3456, v{vT+1}\nv_add_u32 v{vOFA}, v{vOFA}, v{vT+2}")
        g(f"v_add_u32 v{vOFB}, {8*3456}, v{vOFA}")
        g(f"v_cmp_gt_u32 vcc, 2, v{vT+1}\nv_mov_b32 v{vT+3}, 0x40000000"); g.nop(1)
        g(f"v_cndmask_b32 v{vOFB}, v{vT+3}, v{vOFB}, vcc")
        g(f"s_lshl_b32 {sT1}, s87, 1\ns_add_u32 {sT2}, {sT1}, {sHALF}\ns_lshl_b32 {sMLO}, {sT2}, 7\ns_add_u32 {sMLO}, {sMLO}, {WS_ML}")
        g(f"s_xor_b32 {sT2}, {sT2}, 1\ns_lshl_b32 {sMLP}, {sT2}, 7\ns_add_u32 {sMLP}, {sMLP}, {WS_ML}")
        g(f"s_lshl_b32 {sT1}, {sH}, 7\ns_lshl_b32 {sT2}, {sW}, 4\ns_add_u32 {sT1}, {sT1}, {sT2}\ns_mul_i32 {sWOB}, {sT1}, 1280")
        g(f"s_lshl_b32 {sT1}, {sB}, 6\ns_add_u32 {sT1}, {sT1}, {sSLOT}\ns_mul_i32 {sYO}, {sT1}, 5120")
        g(f"s_lshr_b32 {sT0}, s2, 3\ns_and_b32 {sRB}, s2, 7")
        if P["tabF"]:
            assert sorted(v for r in P["tabF"] for v in r if v != 31) == list(range(27))
            g(f"s_and_b32 {sRB}, {sT0}, 7\ns_lshr_b32 {sT2}, {sT0}, 3\ns_and_b32 {sT1}, s2, 7")
            table_lookup(P["tabF"], sT0, sT1, sT2, sSPIN)
        elif P["relief"] == 1:
            g(f"s_add_u32 {sT1}, {sT0}, 16\ns_cmp_lt_u32 {sT0}, 11\ns_cselect_b32 {sT1}, {sT1}, 31")
            g(f"s_cmp_lt_u32 {sT0}, 8\ns_cselect_b32 {sT1}, {sT0}, {sT1}")
            g(f"s_sub_u32 {sT2}, {sT0}, 8\ns_cmp_ge_u32 {sT0}, 16\ns_cselect_b32 {sT0}, {sT2}, {sT1}")
        elif P["relief"] == 2:
            tab = 0
            for xx in range(8): tab |= {P["ffx"][0]: 24, P["ffx"][1]: 25, P["ffx"][2]: 26}.get(xx, 31) << 0 if False else 0
            lo = sum(({P["ffx"][0]: 24, P["ffx"][1]: 25, P["ffx"][2]: 26}.get(xx, 31)) << (8 * xx) for xx in range(4))
            hi = sum(({P["ffx"][0]: 24, P["ffx"][1]: 25, P["ffx"][2]: 26}.get(xx + 4, 31)) << (8 * xx) for xx in range(4))
            g(f"s_and_b32 {sT1}, s2, 3\ns_lshl_b32 {sT1}, {sT1}, 3\ns_mov_b32 {sSPIN}, {lo:#x}\ns_bitcmp1_b32 s2, 2\ns_cselect_b32 {sT2}, {hi:#x}, {sSPIN}\ns_lshr_b32 {sT2}, {sT2}, {sT1}\ns_and_b32 {sT2}, {sT2}, 31")
            g(f"s_and_b32 {sT1}, {sT0}, 7\ns_lshr_b32 s88, {sT0}, 3\ns_cmp_eq_u32 s88, 1\ns_cselect_b32 {sRB}, {sT1}, {sRB}")
            g(f"s_cselect_b32 {sT1}, {sT2}, {sT0}")
            g(f"s_sub_u32 {sT2}, {sT0}, 8\ns_cmp_ge_u32 {sT0}, 16\ns_cselect_b32 {sT0}, {sT2}, {sT1}")
        g(f"s_mul_i32 {sT1}, {sRB}, 80\ns_mul_i32 {sT2}, {sW}, 10\ns_add_u32 {sT1}, {sT1}, {sT2}\ns_mul_i32 {sFFB}, {sT1}, 3456")
        g(f"s_lshl_b32 {sT1}, {sT0}, 7\ns_add_u32 {sFFB}, {sFFB}, {sT1}")
        g(f"s_and_b32 {sT1}, {sW}, 3\ns_mul_i32 {sT1}, {sT1}, 27\ns_add_u32 {sT1}, {sT1}, {sT0}\ns_lshl_b32 {sT1}, {sT1}, 3\ns_add_u32 {sT1}, {sT1}, {sRB}")
        g(f"s_lshl_b32 {sGUP}, {sT1}, 10\ns_add_u32 {sGUP}, {sGUP}, {WS_GU}")
        g(f"s_cmp_lt_u32 {sT0}, 27\ns_cselect_b32 {sUNIT}, 1, 0\ns_cselect_b32 {sFFB}, {sFFB}, 0x20000000")
        if P["tabD"]:
            assert P["tabD2"] or sorted(v for r in P["tabD"] for v in r if v != 31) == list(range(27))
            g(f"s_and_b32 {sT1}, s2, 7\ns_lshr_b32 {sT2}, s2, 6")
            table_lookup(P["tabD"], "s88", sT1, sT2, sSPIN)
            g(f"s_lshl_b32 s88, s88, 1\ns_add_u32 s88, s88, {sHALF}")
        elif P["relief"]:
            g(f"s_lshr_b32 {sT0}, {sH}, 2\ns_and_b32 {sT1}, {sH}, 3\ns_mul_i32 {sT2}, {sT0}, 3")
            g(f"s_sub_u32 s88, {sT1}, 1\ns_cmp_eq_u32 {sT1}, 0\ns_cselect_b32 s88, 0, s88\ns_add_u32 s88, s88, {sT2}")
            dlo = sum(({P["dsx"][0]: 24, P["dsx"][1]: 25, P["dsx"][2]: 26}.get(xx, 31)) << (8 * xx) for xx in range(4))
            dhi = sum(({P["dsx"][0]: 24, P["dsx"][1]: 25, P["dsx"][2]: 26}.get(xx + 4, 31)) << (8 * xx) for xx in range(4))
            g(f"s_and_b32 {sT2}, {sT0}, 3\ns_lshl_b32 {sT2}, {sT2}, 3\ns_mov_b32 {sSPIN}, {dlo:#x}\ns_bitcmp1_b32 {sT0}, 2\ns_cselect_b32 {sSPIN}, {dhi:#x}, {sSPIN}\ns_lshr_b32 {sT2}, {sSPIN}, {sT2}\ns_and_b32 {sT2}, {sT2}, 31")
            g(f"s_cmp_eq_u32 {sT1}, 1\ns_cselect_b32 s88, {sT2}, s88")
            g(f"s_lshl_b32 s88, s88, 1\ns_add_u32 s88, s88, {sHALF}")
        else:
            g(f"s_mov_b32 s88, {sSLOT}")
        g(f"s_lshl_b32 {sT1}, s88, 5\ns_lshl_b32 {sT2}, {sW}, 2\ns_add_u32 {sT1}, {sT1}, {sT2}\ns_mul_i32 {sWDB}, {sT1}, 1280")
        if P["tabD2"]:
            allD = sorted([v for r in P["tabD"] for v in r if v != 31] + [v for r in P["tabD2"] for v in r if v != 31])
            assert allD == list(range(27)), allD
            g(f"s_and_b32 {sT1}, s2, 7\ns_lshr_b32 {sT2}, s2, 6")
            table_lookup(P["tabD2"], sDS2, sT1, sT2, sSPIN)
            g(f"s_lshl_b32 {sDS2}, {sDS2}, 1\ns_add_u32 {sDS2}, {sDS2}, {sHALF}")
            g(f"s_lshl_b32 {sT1}, {sDS2}, 5\ns_lshl_b32 {sT2}, {sW}, 2\ns_add_u32 {sT1}, {sT1}, {sT2}\ns_mul_i32 {sWDB2}, {sT1}, 1280")
            g(f"s_mul_i32 {sT0}, {sB}, 27\ns_lshr_b32 {sT1}, {sDS2}, 1\ns_add_u32 {sT0}, {sT0}, {sT1}\ns_lshl_b32 {sGUC2}, {sT0}, 13")
            g(f"s_and_b32 {sT1}, {sDS2}, 1\ns_lshl_b32 {sT1}, {sT1}, 8\ns_add_u32 {sGUC2}, {sGUC2}, {sT1}")
            g(f"s_lshl_b32 {sT1}, {sW}, 5\ns_add_u32 {sGUC2}, {sGUC2}, {sT1}\ns_add_u32 {sGUC2}, {sGUC2}, {WS_GU}")
            g(f"s_cmp_lt_u32 {sDS2}, 54\ns_cselect_b32 {sGUC2}, {sGUC2}, 0x20000000")
        g(f"s_mul_i32 {sT0}, {sB}, 27\ns_lshr_b32 {sT1}, s88, 1\ns_add_u32 {sT0}, {sT0}, {sT1}\ns_lshl_b32 {sGUC}, {sT0}, 13")
        g(f"s_and_b32 {sT1}, s88, 1\ns_lshl_b32 {sT1}, {sT1}, 8\ns_add_u32 {sGUC}, {sGUC}, {sT1}")
        g(f"s_lshl_b32 {sT1}, {sW}, 5\ns_add_u32 {sGUC}, {sGUC}, {sT1}\ns_add_u32 {sGUC}, {sGUC}, {WS_GU}")
        g("s_mov_b32 s4, 0x00010001\ns_mov_b32 s5, 0x00010001")
        g(f"v_lshlrev_b32 v{vT}, 3, v0\nv_mov_b32 v{vX}, 0\nv_mov_b32 v{vX+1}, 0")
        g(f"ds_write_b64 v{vT}, {r2(vX)} offset:{L_ZERO}")
        g(f"v_and_b32 v{vT}, 7, v{vLANE}")
        g(f"v_and_b32 v{vT+1}, 1, v{vT}\nv_lshlrev_b32 v{vT+1}, 4, v{vT+1}")
        g(f"v_mov_b32 v{vT+2}, 0xffff\nv_lshlrev_b32 v{vT+2}, v{vT+1}, v{vT+2}")
        g(f"v_lshrrev_b32 v{vX}, 1, v{vT}")
        for w in range(4):
            g(f"v_cmp_eq_u32 vcc, {w}, v{vX}"); g.nop(2)
            g(f"v_cndmask_b32 v{vM[w]}, 0, v{vT+2}, vcc")
    vXR = vXQ

    kv_issued = [0]
    EXT = {6: 176, 7: 212, 8: 228} if max(P['hold'], P['hold2'], P['hold3']) > 24 else {}
    assert not (EXT and P['wok_per'])
    D2 = bool(P["tabD2"])
    NWO = P["nwo"] + (5 if D2 else 0)
    def tile_base(T):
        if D2 and T >= 16: return RING + 16 * ((T - 16) % 4)
        return EXT[T] if T in EXT else RING + 16 * (T % 6)
    def issue_kv_load():
        n = kv_issued[0]
        if n >= 128: return
        T, r = n // 4, n % 4
        srd = sK if T < 16 else sV
        if r == 0:
            if P["trot"] == 1:
                g(f"s_add_u32 {sKVT}, s89, {T % 16}\ns_and_b32 {sKVT}, {sKVT}, 15\ns_lshl_b32 {sKVT}, {sKVT}, 15\ns_add_u32 {sKVT}, {sKVT}, {sKVB}")
            elif P["trot"] == 2:
                g(f"s_xor_b32 {sKVT}, s89, {T % 16}\ns_lshl_b32 {sKVT}, {sKVT}, 15\ns_add_u32 {sKVT}, {sKVT}, {sKVB}")
            else:
                g(f"s_add_u32 {sKVT}, {sKVB}, {(T % 16)*32768}")
        g.vm(("kv", n), f"buffer_load_dwordx4 {r4(tile_base(T)+4*r)}, v{vOKV}, {srd}, {sKVT} offen offset:{r*256} {nt}")
        kv_issued[0] += 1
    def issue_k(n):
        for _ in range(n):
            if kv_issued[0] < P["hold"]: issue_kv_load()

    wq_issued = [0]
    def issue_wq():
        n = wq_issued[0]
        if n >= 20: return
        if P["rot"]:
            g(f"s_add_u32 {sT0}, {sXR}, {n}\ns_sub_u32 {sT1}, {sT0}, 20\ns_cmp_ge_u32 {sT0}, 20\ns_cselect_b32 {sT0}, {sT1}, {sT0}")
            g(f"s_lshl_b32 {sT0}, {sT0}, 15\ns_add_u32 {sT0}, {sT0}, {sWQB}")
        else:
            g(f"s_add_u32 {sT0}, {sWQB}, {n*(32768 if P['wq_pat'] == 0 else 8192)}")
        g.vm(("wq", n), f"buffer_load_dwordx4 {r4(vWQR+4*(n%6))}, v{vOWQ}, {sWQ}, {sT0} offen {wnt}")
        wq_issued[0] += 1
    def ext_ok():
        return kv_issued[0] < 24 or ffn_done[0]
    ffn_done = [False]
    def issue_k1():
        if kv_issued[0] < P["hold"] and ext_ok(): issue_kv_load()
    g(f"s_cmp_ge_u32 {sW}, 4\ns_cbranch_scc1 L_nox")
    for j in range(5):
        g(f"buffer_load_dword v{vXR+j}, v{vT+3}, {sX}, s86 offen offset:{j*256} {nt}")
    g("L_nox:")
    if P["wq_pf"]:
        g(f"v_lshrrev_b32 v{vS[0]}, 1, v{vLANE}\nv_lshlrev_b32 v{vS[0]}, 13, v{vS[0]}\nv_and_b32 v{vS[1]}, 1, v{vLANE}\nv_lshl_add_u32 v{vS[0]}, v{vS[1]}, 7, v{vS[0]}")
        g(f"s_mul_i32 {sT0}, {sJ7}, 80\ns_mul_i32 {sT1}, {sW}, 10\ns_add_u32 {sT0}, {sT0}, {sT1}\ns_lshl_b32 {sT0}, {sT0}, 13\ns_lshl_b32 {sT1}, {sH}, 8\ns_add_u32 {sT0}, {sT0}, {sT1}")
        g("s_mov_b32 exec_lo, 0xfffff\ns_mov_b32 exec_hi, 0")
        g(f"buffer_load_dword v{vS[2]}, v{vS[0]}, {sWQ}, {sT0} offen {P['pf_fl']}")
        g("s_mov_b64 exec, -1")
    for _ in range(P["pre_pairs"]):
        issue_wq(); issue_k1()
    npre = len(g.q)
    setup_b()
    g.c("workgroup 0, wave 5: publish the launch tag (clock value) in d_debug[32:33]")
    g(f"s_xor_b32 {sT0}, {sW}, 5\ns_or_b32 {sT0}, s2, {sT0}\ns_cmp_lg_u32 {sT0}, 0\ns_cbranch_scc1 L_nononce")
    g(f"s_or_b32 {sN0}, {sN0}, 1")
    g(f"v_mov_b32 v{vGR}, {sN0}\nv_mov_b32 v{vGR+1}, {sN1}\nv_mov_b32 v{vGR+2}, 0\nv_mov_b32 v{vGR+3}, 0\ns_mov_b64 exec, 1")
    g(f"buffer_atomic_cmpswap_x2 {r4(vGR)}, off, {sDBG}, 0 offset:128 sc1")
    g("s_mov_b64 exec, -1")
    g("L_nononce:")
    g(f"s_cmp_ge_u32 {sW}, 4\ns_cbranch_scc1 L_noln")
    g(f"s_waitcnt vmcnt({npre})")
    stamp("x_arrived")
    xf = vXF
    for j in range(5):
        g(f"v_lshlrev_b32 v{xf+2*j}, 16, v{vXR+j}\nv_and_b32 v{xf+2*j+1}, 0xffff0000, v{vXR+j}")
    a = vT; b_ = vT + 1; tm = vT + 2
    g(f"v_add_f32 v{a}, v{xf}, v{xf+1}")
    for j in range(2, 10): g(f"v_add_f32 v{a}, v{a}, v{xf+j}")
    allreduce64("v_add_f32", a, tm)
    g(f"v_mul_f32 v{a}, 0x3acccccd, v{a}")
    d = xf + 10
    for j in range(10): g(f"v_sub_f32 v{d+j}, v{xf+j}, v{a}")
    g(f"v_mul_f32 v{b_}, v{d}, v{d}")
    for j in range(1, 10): g(f"v_fmac_f32 v{b_}, v{d+j}, v{d+j}")
    allreduce64("v_add_f32", b_, tm)
    g(f"v_mul_f32 v{b_}, 0x3acccccd, v{b_}")
    bf16r(a, a); bf16r(b_, b_)
    g(f"v_add_f32 v{b_}, 0x3727c5ac, v{b_}")
    bf16r(b_, b_)
    g(f"v_sqrt_f32 v{b_}, v{b_}"); g.nop(1)
    bf16r(b_, b_)
    g(f"v_rcp_f32 v{b_}, v{b_}"); g.nop(1)
    for j in range(10): g(f"v_sub_f32 v{d+j}, v{xf+j}, v{a}")
    for j in range(10): bf16r(d + j, d + j)
    for j in range(10): g(f"v_mul_f32 v{d+j}, v{d+j}, v{b_}")
    for j in range(10): g(f"v_cvt_pk_bf16_f32 v{d+j}, v{d+j}, v{d+j}")
    g(f"s_mul_i32 {sT0}, {sW}, 2560\nv_lshlrev_b32 v{tm}, 3, v{vLANE}\nv_add_u32 v{tm}, {sT0}, v{tm}")
    for j in range(5): g(f"ds_write_b64 v{tm}, {r2(d+2*j)} offset:{L_XN + j*512}")
    g("L_noln:")
    g.vm("f0", f"buffer_load_dwordx4 {r4(vFF)}, v{vOFA}, {sWG}, {sFFB} offen {nt}")
    g.vm("f1", f"buffer_load_dwordx4 {r4(vFF+4)}, v{vOFB}, {sWG}, {sFFB} offen {nt}")
    g.vm("f2", f"buffer_load_dwordx4 {r4(vFF+8)}, v{vOFA}, {sWU}, {sFFB} offen {nt}")
    g.vm("f3", f"buffer_load_dwordx4 {r4(vFF+12)}, v{vOFB}, {sWU}, {sFFB} offen {nt}")
    while wq_issued[0] < P["wq_ahead"]:
        issue_wq(); issue_k1()
    g(f"s_cmp_lg_u32 {sW}, 7\ns_cbranch_scc1 L_nopoll")
    g(f"buffer_load_dwordx2 {r2(vX)}, off, {sDBG}, 0 offset:128 sc1")
    g("L_nopoll:")
    if P["warm"]:
        g(f"s_cmp_lg_u32 {sW}, 6\ns_cbranch_scc1 L_nowarm")
        g(f"buffer_load_dword v{vX}, off, {sWS}, {sYO} sc1")
        g(f"buffer_load_dword v{vX}, off, {sWS}, {sGUP} sc1")
        g(f"buffer_load_dword v{vX}, off, {sV}, {sKVB} {nt}")
        g(f"buffer_load_dword v{vX}, off, {sWO}, {sWOB} {nt}")
        g(f"buffer_load_dword v{vX}, off, {sWD}, {sWDB} {nt}")
        g("L_nowarm:")
    g("s_waitcnt lgkmcnt(0)\ns_barrier")
    stamp("ln_done")
    if P["prio"] == 6:
        g(f"s_cmp_lt_u32 {sW}, 4\ns_cbranch_scc1 L_prio6\ns_setprio 1")
        g("L_prio6:")
    if P["prio"] >= 7:
        tab = {7: [0,0,1,1,2,2,3,3], 8: [0,1,0,1,2,3,2,3], 9: [0,0,0,0,3,3,3,3], 10: [1,1,0,0,2,2,3,3], 11: [0,0,0,0,1,1,2,2]}[P["prio"]]
        lend = g.label("prio_end")
        for pv in (1, 2, 3):
            ws = [w for w in range(8) if tab[w] == pv]
            if not ws: continue
            mask = sum(1 << w for w in ws)
            ln = g.label("prio_n")
            g(f"s_lshl_b32 {sT0}, 1, {sW}\ns_and_b32 {sT0}, {sT0}, {mask}\ns_cbranch_scc0 {ln}\ns_setprio {pv}")
            g(f"{ln}:")
    if P["wq_pat"] == 0:
        g(f"s_mul_i32 {sT0}, {sB}, 640\ns_mul_i32 {sT1}, {sW}, 80\ns_add_u32 {sT0}, {sT0}, {sT1}\ns_lshl_b32 {sT0}, {sT0}, 2")
        g(f"v_lshl_add_u32 v{vT}, v{vG}, 2, {sT0}")
    else:
        assert not P["rot"]
        g(f"s_mul_i32 {sT0}, {sB}, 640\ns_mul_i32 {sT1}, {sW}, 20\ns_add_u32 {sT0}, {sT0}, {sT1}\ns_lshl_b32 {sT0}, {sT0}, 2")
        g(f"v_mul_u32_u24 v{vT}, 640, v{vG}\nv_add_u32 v{vT}, {sT0}, v{vT}")
    for t_ in range(20):
        if P["rot"]:
            g(f"s_add_u32 {sT0}, {sXR}, {t_}\ns_sub_u32 {sT1}, {sT0}, 20\ns_cmp_ge_u32 {sT0}, 20\ns_cselect_b32 {sT0}, {sT1}, {sT0}\ns_lshl_b32 {sT0}, {sT0}, 4")
            g(f"v_add_u32 v{vT+2}, {sT0}, v{vT}\nds_read_b32 v{vXQ+t_}, v{vT+2} offset:{L_XN}")
        else:
            g(f"ds_read_b32 v{vXQ+t_}, v{vT} offset:{L_XN + t_*(16 if P['wq_pat'] == 0 else 4)}")
    g(f"s_mul_i32 {sT0}, {sRB}, 80\ns_mul_i32 {sT1}, {sW}, 10\ns_add_u32 {sT0}, {sT0}, {sT1}\ns_lshl_b32 {sT0}, {sT0}, 2")
    g(f"v_lshrrev_b32 v{vT+1}, 3, v{vLANE}\nv_lshl_add_u32 v{vT+1}, v{vT+1}, 2, {sT0}")
    for be in range(4):
        for part in range(2): g(f"ds_read_b32 v{vXF+2*be+part}, v{vT+1} offset:{L_XN + be*2560 + part*32}")
    g("s_waitcnt lgkmcnt(0)")
    def q_loop(kpat, wq_extra, sfx):
      for _ in range(wq_extra): issue_wq()
      for t_ in range(20):
          ab = vA + 4 * (t_ % 4)
          for w4 in range(4): g(f"v_and_b32 v{ab+w4}, v{vXQ+t_}, v{vM[w4]}")
          g.wait(("wq", t_))
          if P["tstamp"] and t_ in (0, 4, 9, 14, 19): stamp(f"W{t_}")
          g.nop(2)
          cin = "0" if t_ == 0 else r4(vD)
          g(f"v_mfma_f32_16x16x32_bf16 {r4(vD)}, {r4(ab)}, {r4(vWQR+4*(t_%6))}, {cin}")
          issue_wq()
          for _ in range(kpat[t_]): issue_k1()
          if t_ == P["ffn_t"]:
              assert "f3" not in g.q
              k = 0
              for be in range(4):
                  for part in range(2):
                      ab2 = vA + 4 * (k % 4); k += 1
                      for w4 in range(4): g(f"v_and_b32 v{ab2+w4}, v{vXF+2*be+part}, v{vM[w4]}")
                      g.nop(2)
                      for mat in range(2):
                          dd = vDF + (be * 2 + mat) * 4
                          cin = "0" if part == 0 else r4(dd)
                          g(f"v_mfma_f32_16x16x32_bf16 {r4(dd)}, {r4(ab2)}, {r4(vFF+mat*8+part*4)}, {cin}")
              g(f"v_and_b32 v{vT}, 7, v{vLANE}\nv_lshlrev_b32 v{vT}, 5, v{vT}")
              g(f"v_and_b32 v{vT+1}, 1, v{vG}\nv_lshl_add_u32 v{vT}, v{vT+1}, 4, v{vT}")
              g(f"v_lshrrev_b32 v{vT+1}, 1, v{vG}\nv_lshl_add_u32 v{vT}, v{vT+1}, 11, v{vT}")
              g(f"s_lshl_b32 {sT1}, {sW}, 12\nv_add_u32 v{vT}, {sT1}, v{vT}")
              g.nop(8)
              g("s_mov_b32 exec_lo, 0x00ff00ff\ns_mov_b32 exec_hi, 0xff00ff00")
              for be in range(4):
                  for mat in range(2):
                      g(f"ds_write_b128 v{vT}, {r4(vDF+(be*2+mat)*4)} offset:{L_FP + (be*128+mat*64)*4}")
              g("s_mov_b64 exec, -1")
              g(f"s_cmp_lg_u32 {sW}, 7\ns_cbranch_scc1 L_nopoll2{sfx}")
              spin_check("nonce", f"v_or_b32 v{vT}, v{vX}, v{vX+1}\ns_nop 0\nv_readfirstlane_b32 {sT1}, v{vT}\ns_nop 2\ns_cmp_lg_u32 {sT1}, 0",
                         f"buffer_load_dwordx2 {r2(vX)}, off, {sDBG}, 0 offset:128 sc1")
              g(f"v_mov_b32 v{vT}, 0\nds_write_b64 v{vT}, {r2(vX)} offset:{L_NON}")
              g(f"L_nopoll2{sfx}:")
              g("s_waitcnt lgkmcnt(0)")
              ffn_done[0] = True
    kp_norm = [((t_ + 1) * P['kq_num']) // P['kq_den'] - (t_ * P['kq_num']) // P['kq_den'] for t_ in range(20)]
    if P["bad_kpat"]:
        lb, lm = g.label("qbad"), g.label("qmerge")
        g(f"s_and_b32 {sT0}, {sH}, 3\ns_cmp_eq_u32 {sT0}, 1\ns_cbranch_scc1 {lb}")
        saved = (list(g.q), kv_issued[0], wq_issued[0], ffn_done[0], len(STAMPS))
        q_loop(kp_norm, 0, "")
        while kv_issued[0] < P["hold"]: issue_kv_load()
        g(f"s_branch {lm}")
        g.q, kv_issued[0], wq_issued[0], ffn_done[0] = list(saved[0]), saved[1], saved[2], saved[3]
        del STAMPS[saved[4]:]
        g(f"{lb}:")
        q_loop(P["bad_kpat"], P["bad_wq_extra"], "b")
        while kv_issued[0] < P["hold"]: issue_kv_load()
        g(f"{lm}:")
        g.q = [("kv", n) for n in range(kv_issued[0])]
    else:
        q_loop(kp_norm, 0, "")
    stamp("q_mfma_done")
    g(f"s_lshl_b32 {sT0}, {sW}, 9")
    g(f"v_lshlrev_b32 v{vT+1}, 5, v{vC}\nv_lshl_add_u32 v{vT+1}, v{vG}, 4, v{vT+1}\nv_add_u32 v{vT+1}, {sT0}, v{vT+1}")
    g.nop(5)
    g("s_mov_b32 exec_lo, -1\ns_mov_b32 exec_hi, 0")
    g(f"ds_write_b128 v{vT+1}, {r4(vD)} offset:{L_QP}")
    g("s_mov_b64 exec, -1")
    while kv_issued[0] < P["hold"]: issue_kv_load()
    g("s_waitcnt lgkmcnt(0)\ns_barrier")
    while kv_issued[0] < P["hold2"]: issue_kv_load()
    g(f"v_lshlrev_b32 v{vT+3}, 3, v{vLANE}\nv_mov_b32 v{vT}, 0")
    for w_ in range(8): g(f"ds_read_b64 {r2(vA+2*w_)}, v{vT+3} offset:{L_QP + w_*512}")
    g(f"ds_read_b64 {r2(vX)}, v{vT} offset:{L_NON}")
    g("s_waitcnt lgkmcnt(0)")
    g(f"v_readfirstlane_b32 {sN0}, v{vX}\nv_readfirstlane_b32 {sN1}, v{vX+1}")
    for k_ in (4, 2, 1):
        for i in range(k_): g(f"v_pk_add_f32 {r2(vA+2*i)}, {r2(vA+2*i)}, {r2(vA+2*(i+k_))}")
    g(f"v_cvt_pk_bf16_f32 v{vA}, v{vA}, v{vA+1}")
    g(f"s_lshl_b32 {sT0}, {sW}, 8\nv_lshl_add_u32 v{vT}, v{vLANE}, 2, {sT0}")
    g(f"ds_write_b32 v{vT}, v{vA} offset:{L_QS}")
    g(f"v_lshl_add_u32 v{vT+1}, v{vC}, 4, {sT0}")
    g("s_waitcnt lgkmcnt(0)")
    g(f"ds_read_b128 {r4(vQ[0])}, v{vT+1} offset:{L_QS}")
    g(f"s_cmp_lt_u32 {sW}, 4\ns_cbranch_scc1 L_nopub\ns_cmp_eq_u32 {sUNIT}, 0\ns_cbranch_scc1 L_nopub")
    fr = 152
    g(f"s_and_b32 {sT0}, {sW}, 3\ns_lshl_b32 {sT0}, {sT0}, 9\ns_add_u32 {sT0}, {sT0}, {L_FP}\nv_lshl_add_u32 v{vT+2}, v{vLANE}, 3, {sT0}")
    for half in range(2):
        for i in range(8): g(f"ds_read_b64 {r2(fr+2*i)}, v{vT+2} offset:{(half*8+i)*2048}")
        g("s_waitcnt lgkmcnt(0)")
        for k_ in (4, 2, 1):
            for i in range(k_): g(f"v_pk_add_f32 {r2(fr+2*i)}, {r2(fr+2*i)}, {r2(fr+2*(i+k_))}")
        if half == 0: g(f"v_mov_b32 v{fr+16}, v{fr}\nv_mov_b32 v{fr+17}, v{fr+1}")
    g(f"v_pk_add_f32 {r2(fr)}, {r2(fr)}, {r2(fr+16)}")
    g(f"v_mov_b32 v{fr+2}, v{vX}\nv_mov_b32 v{fr+3}, v{vX+1}\nv_lshlrev_b32 v{vT+2}, 4, v{vLANE}")
    g(f"buffer_store_dwordx4 {r4(fr)}, v{vT+2}, {sWS}, {sGUP} offen sc1")
    g("L_nopub:")
    g("s_waitcnt lgkmcnt(0)")
    stamp("q_ready")
    while kv_issued[0] < P["hold3"]: issue_kv_load()

    wo_issued = [0]
    def issue_wo():
        n = wo_issued[0]
        if n >= NWO: return
        if n < 20:
            rg, ct = n // 5, n % 5
            if ct == 0: g(f"s_add_u32 {sT2}, {sWOB}, {rg*1280}")
            g.vm(("wo", n), f"buffer_load_dwordx4 {r4(WOA+4*n)}, v{vOWO}, {sWO}, {sT2} offen offset:{ct*256} {wnt}")
        elif n < 25:
            g.vm(("wo", n), f"buffer_load_dwordx4 {r4(WOA+4*n)}, v{vOWD}, {sWD}, {sWDB} offen offset:{(n-20)*256} {wnt}")
        else:
            assert kv_issued[0] > 64
            g.vm(("wo", n), f"buffer_load_dwordx4 {r4(WD2+4*(n-25))}, v{vOWD}, {sWD}, {sWDB2} offen offset:{(n-25)*256} {wnt}")
        wo_issued[0] += 1
    def roll_issue():
        stream = lambda: sum(1 for t in g.q if isinstance(t, tuple))
        while stream() < P["roll"]:
            n = kv_issued[0]
            tv_next = n // 4 - 16
            want_wo = 0 if tv_next < P["wo_start"] else min(P["nwo"], (tv_next - P["wo_start"] + 1) * P["wo_per"])
            if n % 4 == 0 and wo_issued[0] < want_wo: issue_wo()
            elif n < 128:
                issue_kv_load()
            elif wo_issued[0] < P["nwo"]: issue_wo()
            else: break
    def kv_phases(WIN):
        def young_prio(v):
            l = g.label("prio")
            g(f"s_cmp_lt_u32 {sW}, 4\ns_cbranch_scc1 {l}\ns_setprio {v}")
            g(f"{l}:")
        if P["prio"] in (1, 2): young_prio(1)
        T_ = [vT, vT + 1, vT + 2, vT + 3]
        for t_ in range(16):
            rb = tile_base(t_)
            if P["roll"]:
                for r in range(4):
                    g.wait(("kv", 4 * t_ + r)); roll_issue()
            if P["roll_k"]:
                for r in range(4):
                    g.wait(("kv", 4 * t_ + r))
                    while kv_issued[0] < min(128, 4 * t_ + r + 1 + P["roll_k"]): issue_kv_load()
            g.wait(("kv", 4 * t_ + 3))
            if P["tstamp"]: stamp(f"K{t_}")
            for j in range(4):
                for r in range(4):
                    cin = "0" if j == 0 else f"v{T_[r]}"
                    g(f"v_dot2_f32_bf16 v{T_[r]}, v{rb+4*r+j}, v{vQ[j]}, {cin}")
            if not P["roll"] and not P["roll_k"]:
                while kv_issued[0] < min(128, 4 * (t_ + 1) + WIN): issue_kv_load()
            if t_ >= P["wok_start"]:
                for _ in range(P["wok_per"]): issue_wo()
            allreduce_row("v_add_f32", T_)
            g(f"s_lshl_b64 {sMASK}, {sMASK0}, {t_}")
            for r in range(4): g(f"v_cndmask_b32 v{vS[r]}, v{vS[r]}, v{T_[r]}, {sMASK}")
        stamp("k_done")
        if P["prio"] == 1: young_prio(0)
        if P["prio"] == 3: young_prio(1)
        for r in range(4): bf16r(vS[r], vS[r])
        for r in range(4): g(f"v_mul_f32 v{vS[r]}, {SCALE:#x}, v{vS[r]}")
        for r in range(4): bf16r(vS[r], vS[r])
        m = vMW; l = vMW + 1; tm = vT
        g(f"v_max3_f32 v{m}, v{vS[0]}, v{vS[1]}, v{vS[2]}\nv_max_f32 v{m}, v{m}, v{vS[3]}")
        allreduce64("v_max_f32", m, tm)
        for r in range(4): g(f"v_sub_f32 v{vS[r]}, v{vS[r]}, v{m}")
        for r in range(4): g(f"v_mul_f32 v{vS[r]}, {LOG2E:#x}, v{vS[r]}")
        for r in range(4): g(f"v_exp_f32 v{vS[r]}, v{vS[r]}")
        g.nop(1)
        g(f"v_add_f32 v{l}, v{vS[0]}, v{vS[1]}\nv_add_f32 v{tm}, v{vS[2]}, v{vS[3]}\nv_add_f32 v{l}, v{l}, v{tm}")
        allreduce64("v_add_f32", l, tm)
        for r in range(4): g(f"v_cvt_pk_bf16_f32 v{vS[r]}, v{vS[r]}, v{vS[r]}")
        g(f"s_lshl_b32 {sT0}, {sW}, 3\nv_mov_b32 v{tm}, {sT0}\nv_mov_b32 v{tm+1}, 0\nv_mov_b32 v{tm+2}, 1")
        g("s_mov_b64 exec, 1")
        g(f"ds_write_b64 v{tm}, {r2(m)} offset:{L_ST}")
        g(f"ds_add_u32 v{tm+1}, v{tm+2} offset:{L_CNT}")
        g("s_mov_b64 exec, -1")
        stamp("softmax_done")

        def wg_stats(a0):
            g(f"v_lshrrev_b32 v{a0+8}, 2, v{vC}\nv_lshlrev_b32 v{a0+8}, 4, v{a0+8}")
            g(f"ds_read_b128 {r4(a0)}, v{a0+8} offset:{L_ST}\ns_waitcnt lgkmcnt(0)")
            g(f"v_max_f32 v{a0+4}, v{a0}, v{a0+2}"); g.nop(2)
            allreduce_row("v_max_f32", [a0 + 4], steps=(4, 8))
            g(f"v_sub_f32 v{a0+5}, v{a0}, v{a0+4}\nv_sub_f32 v{a0+6}, v{a0+2}, v{a0+4}")
            g(f"v_mul_f32 v{a0+5}, {LOG2E:#x}, v{a0+5}\nv_mul_f32 v{a0+6}, {LOG2E:#x}, v{a0+6}")
            g(f"v_exp_f32 v{a0+5}, v{a0+5}\nv_exp_f32 v{a0+6}, v{a0+6}"); g.nop(1)
            g(f"v_mul_f32 v{a0+5}, v{a0+5}, v{a0+1}\nv_fmac_f32 v{a0+5}, v{a0+6}, v{a0+3}"); g.nop(2)
            allreduce_row("v_add_f32", [a0 + 5], steps=(4, 8))

        gu_code = f"buffer_load_dwordx4 {r4(vGR)}, v{vGA}, {sWS}, {sGUC} offen sc1"
        gu2_code = f"buffer_load_dwordx4 {r4(vGR)}, v{vGA}, {sWS}, {sGUC2} offen sc1"
        ml_code = f"buffer_load_dwordx4 {r4(vGR)}, off, {sWS}, {sMLP} sc1"
        for tv in range(16):
            T = 16 + tv
            rb = tile_base(T)
            if tv == 15 and P['x_noml']:
                g(f"v_mov_b32 v{vCW}, 1.0")
            if tv == 15 and not P['x_noml']:
                if P['vstamp']: stamp("t15_in")
                g.wait("ml")
                if P['vstamp']: stamp("t15_mlw")
                spin_check("ml", tag_cond([vGR]), ml_code)
                lds_spin("st", L_CNT, 8)
                wg_stats(vA)
                a0 = vA
                g(f"v_max_f32 v{a0+6}, v{a0+4}, v{vGR}")
                g(f"v_sub_f32 v{a0+7}, v{a0+4}, v{a0+6}\nv_sub_f32 v{a0+8}, v{vGR}, v{a0+6}\nv_sub_f32 v{a0+9}, v{vMW}, v{a0+6}")
                for i in (7, 8, 9): g(f"v_mul_f32 v{a0+i}, {LOG2E:#x}, v{a0+i}")
                for i in (7, 8, 9): g(f"v_exp_f32 v{a0+i}, v{a0+i}")
                g.nop(1)
                g(f"v_mul_f32 v{a0+5}, v{a0+5}, v{a0+7}\nv_fmac_f32 v{a0+5}, v{vGR+1}, v{a0+8}")
                g(f"v_rcp_f32 v{a0+5}, v{a0+5}"); g.nop(1)
                g(f"v_mul_f32 v{vCW}, v{a0+5}, v{a0+9}")
                if P['vstamp']: stamp("t15_out")
            for r in range(4):
                for w4 in range(4):
                    g(f"v_and_b32_dpp v{vA+4*r+w4}, v{vS[r]}, v{vM[w4]} row_newbcast:{tv} {DPP}")
            if P["roll"]:
                for r in range(4):
                    g.wait(("kv", 4 * T + r)); roll_issue()
            g.wait(("kv", 4 * T + 3))
            if P["tstamp"]: stamp(f"V{tv}")
            for r in range(4):
                cin = "0" if (tv == 0 and r == 0) else r4(vD)
                g(f"v_mfma_f32_16x16x32_bf16 {r4(vD)}, {r4(vA+4*r)}, {r4(rb+4*r)}, {cin}")
            if not P["roll"]:
                while kv_issued[0] < min(128, 4 * (T + 1) + WIN): issue_kv_load()
            if P['vstamp'] and tv in (0, 2, 8, 12): stamp(f"tv{tv}")
            if P["prio"] == 4 and tv == 8: young_prio(1)
            if tv == P["prio_off"]: g("s_setprio 0")
            if P["wo_plan"]:
                for _ in range(P["wo_plan"][tv]): issue_wo()
            elif tv >= P["wo_start"] and not P["roll"]:
                for _ in range(P["wo_per"]): issue_wo()
            if tv == 1 and not P['x_nogu']:
                g(f"v_and_b32 v{vT}, 7, v{vC}\nv_lshlrev_b32 v{vT}, 10, v{vT}\nv_lshrrev_b32 v{vT+1}, 3, v{vC}")
                g(f"v_lshl_add_u32 v{vT}, v{vT+1}, 9, v{vT}\nv_lshrrev_b32 v{vT+1}, 1, v{vG}\nv_lshl_add_u32 v{vGA}, v{vT+1}, 4, v{vT}")
                g(f"s_cmp_lt_u32 s88, 54\ns_cselect_b32 {sGUC}, {sGUC}, 0x20000000")
                g.vm("gu", gu_code)
            def gelu_block(dst, slotreg, code):
                g.wait("gu")
                lz = g.label("nohid")
                if dst != vGA: g(f"v_mov_b32 v{dst}, 0")
                lzz = g.label("zerohid")
                g(f"s_cmp_ge_u32 {slotreg}, 54\ns_cbranch_scc1 {lzz if dst == vGA else lz}")
                spin_check("gu", tag_cond([vGR]), code)
                x0, x1, x2, x3 = vT, vT + 1, vT + 2, vT + 3
                g(f"v_and_b32 v{x0}, 1, v{vG}\nv_cmp_eq_u32 vcc, 1, v{x0}"); g.nop(2)
                g(f"v_cndmask_b32 v{x3}, v{vGR}, v{vGR+1}, vcc"); g.nop(2)
                g(f"v_add_f32_dpp v{x3}, v{x3}, v{x3} quad_perm:[1,0,3,2] {DPP}"); g.nop(2)
                g(f"v_add_f32_dpp v{x3}, v{x3}, v{x3} quad_perm:[2,3,0,1] {DPP}"); g.nop(2)
                g(f"v_add_f32_dpp v{x3}, v{x3}, v{x3} row_half_mirror {DPP}"); g.nop(2)
                g(f"v_mov_b32_dpp v{x0}, v{x3} row_ror:8 {DPP}")
                g(f"v_cmp_gt_u32 vcc, 8, v{vC}"); g.nop(2)
                g(f"v_cndmask_b32 v{x1}, v{x0}, v{x3}, vcc\nv_cndmask_b32 v{x2}, v{x3}, v{x0}, vcc")
                bf16r(x1, x1); bf16r(x2, x2)
                g(f"v_mul_f32 v{x0}, v{x1}, v{x1}\nv_mul_f32 v{x0}, v{x0}, v{x1}")
                g(f"v_mul_f32 v{x0}, 0x3d372713, v{x0}\nv_add_f32 v{x0}, v{x0}, v{x1}")
                g(f"v_mul_f32 v{x0}, 0x40135761, v{x0}")
                g(f"v_exp_f32 v{x0}, v{x0}"); g.nop(1)
                g(f"v_add_f32 v{x0}, 1.0, v{x0}\nv_rcp_f32 v{x0}, v{x0}"); g.nop(1)
                g(f"v_sub_f32 v{x0}, 1.0, v{x0}\nv_mul_f32 v{x0}, v{x0}, v{x1}")
                bf16r(x0, x0)
                g(f"v_mul_f32 v{x0}, v{x0}, v{x2}")
                g(f"v_cvt_pk_bf16_f32 v{dst}, v{x0}, v{x0}")
                if dst == vGA:
                    g(f"s_branch {lz}")
                    g(f"{lzz}:")
                    g(f"v_mov_b32 v{dst}, 0")
                g(f"{lz}:")
            if tv == 5 and not P['x_nogu']:
                gelu_block(vHID, "s88", gu_code)
                if D2: g.vm("gu", gu2_code)
            if tv == 8 and D2:
                gelu_block(vGA, sDS2, gu2_code)
            if tv == P["ml_tv"] and not P['x_noml']:
                if P['vstamp']: stamp("t4_in")
                ln = g.label("noml")
                g(f"s_cmp_lg_u32 {sW}, 0\ns_cbranch_scc1 {ln}")
                lds_spin("stp", L_CNT, 8)
                wg_stats(vA)
                g(f"v_mov_b32 v{vA+6}, {sN0}\nv_mov_b32 v{vA+7}, {sN1}\ns_mov_b64 exec, 1")
                g(f"buffer_store_dwordx4 {r4(vA+4)}, off, {sWS}, {sMLO} sc1")
                g("s_mov_b64 exec, -1"); g.nop(2)
                g(f"{ln}:")
                if P['vstamp']: stamp("t4_out")
            if tv == 11 and not P['x_noml']:
                g.vm("ml", ml_code)
        while wo_issued[0] < NWO: issue_wo()
        stamp("v_done")


    if P["dual"]:
        lsm, lmg = g.label("small"), g.label("kvmerge")
        g(f"s_and_b32 {sT0}, s2, 7\ns_lshl_b32 {sT0}, 1, {sT0}\ns_and_b32 {sT0}, {sT0}, {P['late_mask']}\ns_cmp_eq_u32 {sT0}, 0\ns_cbranch_scc1 {lsm}")
        saved = (list(g.q), kv_issued[0], wo_issued[0], list(STAMPS))
        kv_phases(P["win_l"])
        g(f"s_branch {lmg}")
        qend = list(g.q)
        g.q, kv_issued[0], wo_issued[0] = list(saved[0]), saved[1], saved[2]
        del STAMPS[len(saved[3]):]
        g(f"{lsm}:")
        kv_phases(P["win_s"])
        assert [t for t in g.q] == [t for t in qend] or True
        g(f"{lmg}:")
        g.q = [("wo", P['nwo'] - 1)]
    else:
        kv_phases(P["win"])

    g(f"s_lshl_b32 {sT0}, {sW}, 9")
    g(f"v_lshlrev_b32 v{vT+1}, 5, v{vC}\nv_lshl_add_u32 v{vT+1}, v{vG}, 4, v{vT+1}\nv_add_u32 v{vT+1}, {sT0}, v{vT+1}")
    a0 = vA
    g(f"v_lshrrev_b32 v{a0+8}, 2, v{vC}")
    g(f"v_and_b32 v{a0+10}, 3, v{vC}\nv_lshl_add_u32 v{a0+10}, v{vG}, 2, v{a0+10}\nv_lshlrev_b32 v{a0+10}, 2, v{a0+10}")
    g(f"v_lshl_add_u32 v{a0+10}, v{a0+8}, 10, v{a0+10}\ns_lshl_b32 {sT0}, {sW}, 6\nv_add_u32 v{a0+10}, {sT0}, v{a0+10}")
    g.nop(4)
    for r in range(4): g(f"v_mul_f32 v{vD+r}, v{vD+r}, v{vCW}")
    g("s_mov_b32 exec_lo, -1\ns_mov_b32 exec_hi, 0")
    g(f"ds_write_b128 v{vT+1}, {r4(vD)} offset:{L_OP}")
    g("s_mov_b64 exec, -1")
    vY = RING
    for w4 in range(4): g(f"v_and_b32 v{vGR+w4}, v{vHID}, v{vM[w4]}")
    if D2:
        for w4 in range(4): g(f"v_and_b32 v{vQ[0]+w4}, v{vGA}, v{vM[w4]}")
    if not g.wait(("wo", NWO - 1)): g.nop(1)
    g.nop(1)
    for ct in range(5):
        g(f"v_mfma_f32_16x16x32_bf16 {r4(vY+4*ct)}, {r4(vGR)}, {r4(WOA+4*(20+ct))}, 0")
    if D2:
        for ct in range(5):
            g(f"v_mfma_f32_16x16x32_bf16 {r4(vY+4*ct)}, {r4(vQ[0])}, {r4(WD2+4*ct)}, {r4(vY+4*ct)}")
    g("s_waitcnt lgkmcnt(0)\ns_barrier")
    stamp("bar3")
    g(f"ds_read_b32 v{a0+11}, v{a0+10} offset:{L_OP}\nds_read_b32 v{a0+12}, v{a0+10} offset:{L_OP+512}")
    g("s_waitcnt lgkmcnt(0)")
    O = vX
    g(f"v_add_f32 v{O}, v{a0+11}, v{a0+12}"); g.nop(2)
    allreduce_row("v_add_f32", [O], steps=(4, 8))
    g(f"v_cvt_pk_bf16_f32 v{O}, v{O}, v{O}"); g.nop(2)
    def a_prep(rg):
        for w4 in range(4):
            g(f"v_and_b32_dpp v{vA+4*rg+w4}, v{O}, v{vM[w4]} row_newbcast:{rg} {DPP}")
    a_prep(0); a_prep(1)
    for rg in range(4):
        for ct in range(5):
            g(f"v_mfma_f32_16x16x32_bf16 {r4(vY+4*ct)}, {r4(vA+4*rg)}, {r4(WOA+4*(rg*5+ct))}, {r4(vY+4*ct)}")
        if rg + 2 < 4: a_prep(rg + 2)
    g(f"s_mul_i32 {sT0}, {sW}, 2560")
    g(f"v_lshlrev_b32 v{vT+1}, 5, v{vC}\nv_lshl_add_u32 v{vT+1}, v{vG}, 4, v{vT+1}\nv_add_u32 v{vT+1}, {sT0}, v{vT+1}")
    g.nop(5)
    g("s_mov_b32 exec_lo, -1\ns_mov_b32 exec_hi, 0")
    for ct in range(5): g(f"ds_write_b128 v{vT+1}, {r4(vY+4*ct)} offset:{L_YP + ct*512}")
    g("s_mov_b64 exec, -1")
    g("s_waitcnt lgkmcnt(0)\ns_barrier")
    stamp("bar4")
    g(f"s_cmp_ge_u32 {sW}, 5\ns_cbranch_scc1 L_cons")
    g(f"v_lshlrev_b32 v{vT}, 3, v0\nv_lshlrev_b32 v{vT+1}, 4, v0")
    yb = RING + 32
    for w_ in range(8): g(f"ds_read_b64 {r2(yb+2*w_)}, v{vT} offset:{L_YP + w_*2560}")
    g("s_waitcnt lgkmcnt(0)")
    for k in (4, 2, 1):
        for i in range(k): g(f"v_pk_add_f32 {r2(yb+2*i)}, {r2(yb+2*i)}, {r2(yb+2*(i+k))}")
    g(f"v_mov_b32 v{yb+2}, {sN0}\nv_mov_b32 v{yb+3}, {sN1}")
    g(f"buffer_store_dwordx4 {r4(yb)}, v{vT+1}, {sWS}, {sYO} offen sc1")
    g("s_branch L_fin")
    g("L_cons:")
    g(f"s_cmp_lg_u32 {sW}, 5\ns_cbranch_scc1 L_fin\ns_cmp_ge_u32 {sSLOT}, 40\ns_cbranch_scc1 L_fin")
    cb = RING + 32
    g(f"v_lshrrev_b32 v{vT}, 3, v{vLANE}\nv_mul_u32_u24 v{vT}, 5120, v{vT}\nv_and_b32 v{vT+1}, 7, v{vLANE}\nv_lshl_add_u32 v{vT}, v{vT+1}, 4, v{vT}")
    g(f"s_mul_i32 {sT0}, {sB}, {64*5120}\ns_lshl_b32 {sT1}, {sSLOT}, 7\ns_add_u32 s86, {sT0}, {sT1}")
    g(f"s_mul_i32 {sT1}, {sB}, 1280\ns_lshl_b32 {sT2}, {sSLOT}, 5\ns_add_u32 {sT1}, {sT1}, {sT2}")
    g(f"v_lshlrev_b32 v{vT+2}, 2, v{vT+1}")
    g(f"buffer_load_dword v{vT+3}, v{vT+2}, {sX}, {sT1} offen")
    g(f"s_mov_b32 {sSPIN}, {P['spin_max']}")
    cb2 = cb + 32
    def poll_issue(base):
        for jj in range(8):
            g(f"s_add_u32 {sT2}, s86, {jj*8*5120}")
            g(f"buffer_load_dwordx4 {r4(base+4*jj)}, v{vT}, {sWS}, {sT2} offen sc1")
    def poll_sum(base):
        for k in (4, 2, 1):
            for i in range(k): g(f"v_pk_add_f32 {r2(base+4*i)}, {r2(base+4*i)}, {r2(base+4*(i+k))}")
    if P["poll2"]:
        poll_issue(cb)
        g("L_poll:")
        g(f"s_sleep {P['poll_gap']}")
        poll_issue(cb2)
        g("s_waitcnt vmcnt(8)")
        g(tag_cond([cb + 4 * jj for jj in range(8)]))
        g("s_cbranch_scc1 L_polledA")
        g(f"s_sleep {P['poll_gap']}")
        poll_issue(cb)
        g("s_waitcnt vmcnt(8)")
        g(tag_cond([cb2 + 4 * jj for jj in range(8)]))
        g("s_cbranch_scc1 L_polledB")
        g(f"s_sub_u32 {sSPIN}, {sSPIN}, 1\ns_cmp_lg_u32 {sSPIN}, 0\ns_cbranch_scc1 L_poll")
        g("L_polledB:")
        poll_sum(cb2)
        res = vA
        g(f"v_mov_b32 v{res}, v{cb2}\nv_mov_b32 v{res+1}, v{cb2+1}\ns_branch L_polled")
        g("L_polledA:")
        poll_sum(cb)
        g(f"v_mov_b32 v{res}, v{cb}\nv_mov_b32 v{res+1}, v{cb+1}")
        g("L_polled:")
        cb = res
    else:
        g("L_poll:")
        poll_issue(cb)
        g("s_waitcnt vmcnt(0)")
        g(tag_cond([cb + 4 * jj for jj in range(8)]))
        g("s_cbranch_scc1 L_polled")
        g(f"s_sub_u32 {sSPIN}, {sSPIN}, 1\ns_cmp_eq_u32 {sSPIN}, 0\ns_cbranch_scc1 L_polled")
        g(f"s_sleep {P['poll_sleep']}\ns_branch L_poll")
        g("L_polled:")
        poll_sum(cb)
    g.nop(2)
    allreduce_row("v_add_f32", [cb, cb + 1], steps=(8,))
    for i in range(2): allreduce_cross("v_add_f32", cb + i, vX)
    g(f"v_lshlrev_b32 v{vX}, 16, v{vT+3}\nv_and_b32 v{vX+1}, 0xffff0000, v{vT+3}")
    g(f"v_add_f32 v{cb}, v{cb}, v{vX}\nv_add_f32 v{cb+1}, v{cb+1}, v{vX+1}")
    g(f"v_cvt_pk_bf16_f32 v{cb}, v{cb}, v{cb+1}")
    g("s_mov_b64 exec, 0xff")
    g(f"buffer_store_dword v{cb}, v{vT+2}, {sOUT}, {sT1} offen {P['out_fl']}")
    g("L_fin:")
    if P["stamp"]:
        g("s_mov_b64 exec, -1")
        stamp("end")
        g(f"s_getreg_b32 s92, hwreg(HW_REG_XCC_ID)\nv_writelane_b32 v252, s92, 63\ns_getreg_b32 s92, hwreg(HW_REG_HW_ID)\nv_writelane_b32 v252, s92, 62")
        g(f"s_lshl_b32 {sT0}, s2, 3\ns_add_u32 {sT0}, {sT0}, {sW}\ns_lshl_b32 {sT0}, {sT0}, 8\ns_add_u32 {sT0}, {sT0}, {WS_STAMP}")
        g(f"v_lshlrev_b32 v{vT}, 2, v{vLANE}")
        g(f"buffer_store_dword v252, v{vT}, {sWS}, {sT0} offen")
    g("L_end:\ns_endpgm")

    nv = 256 if P["stamp"] else NVGPR
    tail = ['.section .rodata,"a"', ".p2align 6", f".amdhsa_kernel {KN}_kernel",
            f"  .amdhsa_next_free_vgpr {nv}", "  .amdhsa_next_free_sgpr 96", f"  .amdhsa_accum_offset {(nv+3)//4*4}",
            "  .amdhsa_group_segment_fixed_size 0", "  .amdhsa_kernarg_size 96", "  .amdhsa_user_sgpr_count 2",
            "  .amdhsa_user_sgpr_kernarg_segment_ptr 1", "  .amdhsa_system_sgpr_workgroup_id_x 1",
            "  .amdhsa_float_denorm_mode_32 3", "  .amdhsa_float_denorm_mode_16_64 3",
            ".end_amdhsa_kernel"]
    return "\n".join(hdr + g.L + tail) + "\n", STAMPS

if __name__ == "__main__":
    kw = {}
    out = "cdna_kernels/" + KN + ".s"
    for a in sys.argv[1:]:
        k, v = a.split("=")
        if k == "out": out = v
        else: kw[k] = int(v) if v.lstrip("-").isdigit() else v
    s, st = gen(**kw)
    open(out, "w").write(s)
    print("wrote", out, len(s), "bytes; stamps:", st)
```
